```python
import torch

def _softmax(x, axis=-1):
    return torch.softmax(x, dim=axis)
def _gelu(x):
    return torch.nn.functional.gelu(x, approximate="tanh")
def _silu(x):
    return torch.nn.functional.silu(x)
def _sigmoid(x):
    return torch.sigmoid(x)
def _layernorm(x, axis=-1, eps=1e-5):
    m = x.mean(dim=axis, keepdim=True)
    v = x.var(dim=axis, keepdim=True, unbiased=False)
    return (x - m) / torch.sqrt(v + eps)
def _scatter_add(tgt, idx, src, axis=0):
    return tgt.clone().index_add_(axis, idx, src)
def _segment_sum(src, seg, n):
    out = torch.zeros((n,) + src.shape[1:], dtype=src.dtype)
    return out.index_add_(0, seg, src)
def _pad(x, pw):
    flat = tuple(v for pair in reversed(pw) for v in pair)
    return torch.nn.functional.pad(x, flat)

kernel_name = 'parallel_sum__mha_block__dense_activation_gelu__prompt'

def setup_inputs():

    _w = (lambda a: (lambda t: t.to(torch.bfloat16) if t.is_floating_point() else t)(torch.as_tensor(a)))
    def _A_setup():
        B, S, D, H = 1, 2048, 448, 16
        return {
            "x": _w((lambda *s: torch.randn(*s, dtype=torch.bfloat16) * 0.05)(B, S, D)),
            "wqkv": _w((lambda *s: torch.randn(*s, dtype=torch.bfloat16) * 0.05)(D, 3 * D)),
            "wo": _w((lambda *s: torch.randn(*s, dtype=torch.bfloat16) * 0.05)(D, D)),
        }
    _A_in = _A_setup()

    def _B_setup():
        B, S, D, F = 1, 2048, 448, 1792
        return {
            "x": _w((lambda *s: torch.randn(*s, dtype=torch.bfloat16) * 0.05)(B, S, D)),
            "w1": _w((lambda *s: torch.randn(*s, dtype=torch.bfloat16) * 0.8)(D, F) * (D ** -0.5)),
            "b1": _w((lambda *s: torch.randn(*s, dtype=torch.bfloat16) * 12.8)(F) * 0.01),
            "w2": _w((lambda *s: torch.randn(*s, dtype=torch.bfloat16) * 0.4)(F, D) * (F ** -0.5)),
            "b2": _w((lambda *s: torch.randn(*s, dtype=torch.bfloat16) * 6.4)(D) * 0.01),
        }
    _B_in = _B_setup()

    return {
        "A_x": _A_in["x"],
        "A_wqkv": _A_in["wqkv"],
        "A_wo": _A_in["wo"],
        "B_x": _B_in["x"],
        "B_w1": _B_in["w1"],
        "B_b1": _B_in["b1"],
        "B_w2": _B_in["w2"],
        "B_b2": _B_in["b2"],
    }

def reference(A_x, A_wqkv, A_wo, B_x, B_w1, B_b1, B_w2, B_b2):
    def _A_ref(x, wqkv, wo):
        B, S, D = x.shape
        H = 16
        Dh = D // H
        qkv = (lambda x, *d: x.permute(*d))((x @ wqkv).reshape(B, S, 3, H, Dh), 2, 0, 3, 1, 4)
        q, k, v = qkv[0], qkv[1], qkv[2]
        scores = torch.einsum("bhqd,bhkd->bhqk", q, k) * (Dh ** -0.5)
        p = _softmax(scores, axis=-1)
        o = torch.einsum("bhqk,bhkd->bhqd", p, v)
        return (lambda x, *d: x.permute(*d))(o, 0, 2, 1, 3).reshape(B, S, D) @ wo

    def _B_ref(x, w1, b1, w2, b2):
        h = torch.einsum("bsd,df->bsf", x, w1) + b1
        h = _gelu(h)
        return torch.einsum("bsf,fd->bsd", h, w2) + b2

    x = A_x
    xn = _layernorm(x, axis=-1)
    return x + _A_ref(xn, A_wqkv, A_wo) + _B_ref(xn, B_w1, B_b1, B_w2, B_b2)
```

```python
import re

TRANS = ("v_exp_f32", "v_log_f32", "v_rcp_f32", "v_rsq_f32", "v_sqrt_f32", "v_sin_f32", "v_cos_f32",
         "v_exp_f16", "v_rcp_f16", "v_rcp_iflag_f32")

_reg_re = re.compile(r"^(-|\|)?(abs\()?([vsa])(\d+)\)?\|?$|^(-)?([vsa])\[(\d+):(\d+)\]$")

def parse_reg(tok):
    tok = tok.strip()
    m = re.match(r"^-?\|?(?:abs\()?([vsa])(\d+)\)?\|?$", tok)
    if m:
        return (m.group(1), int(m.group(2)), int(m.group(2)))
    m = re.match(r"^-?([vsa])\[(\d+):(\d+)\]$", tok)
    if m:
        return (m.group(1), int(m.group(2)), int(m.group(3)))
    if tok in ("vcc", "vcc_lo", "vcc_hi"):
        return ("s", 106, 107)
    if tok == "m0":
        return ("s", 124, 124)
    if tok in ("exec", "exec_lo", "exec_hi"):
        return ("s", 126, 127)
    return None

def regset(r):
    k, lo, hi = r
    if k == "a":
        k = "v"; lo += 512; hi += 512
    return {(k, i) for i in range(lo, hi + 1)}

class Ins:
    __slots__ = ("text", "op", "ops", "rd", "wr", "kind", "passes", "crd", "abrd", "ws", "label")
    def __init__(self, text):
        self.text = text
        self.label = None
        t = text.split(";")[0].strip()
        self.rd = set(); self.wr = set(); self.kind = "other"; self.passes = 0
        self.crd = set(); self.abrd = set(); self.ws = 1
        if t.endswith(":"):
            self.kind = "label"; self.label = t[:-1]; self.op = ""; self.ops = []; self.ws = 0
            return
        if t.startswith(".") or t == "":
            self.kind = "directive"; self.op = ""; self.ops = []; self.ws = 0
            return
        parts = t.split(None, 1)
        self.op = parts[0]
        rest = parts[1] if len(parts) > 1 else ""
        ops = [o.strip() for o in rest.split(",")] if rest else []
        toks = []
        for o in ops:
            toks.append(o.split()[0] if o else o)
        self.ops = toks
        op = self.op
        regs = [parse_reg(x) for x in toks]
        def R(i):
            return regset(regs[i]) if i < len(regs) and regs[i] else set()
        allr = lambda idxs: set().union(*[R(i) for i in idxs]) if idxs else set()
        n = len(toks)
        if op == "s_nop":
            self.kind = "nop"; self.ws = int(toks[0], 0) + 1
        elif op.startswith("v_mfma"):
            self.kind = "mfma"
            self.passes = 8 if "32x32" in op else 4
            self.wr = R(0); self.abrd = R(1) | R(2); self.crd = R(3); self.rd = self.abrd | self.crd
        elif op.startswith("v_cmp"):
            self.kind = "valu"; self.wr = R(0); self.rd = allr(range(1, n))
            if op.startswith("v_cmpx"): self.wr |= {("s", 126), ("s", 127)}
        elif op in ("v_readfirstlane_b32", "v_readlane_b32"):
            self.kind = "valu"; self.wr = R(0); self.rd = allr(range(1, n))
        elif op.startswith("v_permlane"):
            self.kind = "valu"; self.wr = R(0) | R(1); self.rd = R(0) | R(1)
        elif op.startswith("v_"):
            self.kind = "valu"
            self.wr = R(0); self.rd = allr(range(1, n))
            if op.startswith(("v_fmac", "v_dot2c", "v_mac", "v_pk_fmac")): self.rd |= R(0)
            if "_co_" in op or op.startswith("v_div_scale"):
                self.wr |= R(1); self.rd = allr(range(2, n))
            if op.startswith("v_cndmask") and n == 3:
                self.rd |= {("s", 106), ("s", 107)}
            if "sdwa" in op or "UNUSED_PRESERVE" in t: self.rd |= R(0)
            if op.startswith("v_writelane"): self.rd |= R(0)
        elif op.startswith("ds_read") or op.startswith("ds_bpermute") or op.startswith("ds_permute") or op.startswith("ds_swizzle") or "_rtn" in op and op.startswith("ds_"):
            self.kind = "ds"; self.wr = R(0); self.rd = allr(range(1, n))
        elif op.startswith("ds_"):
            self.kind = "ds"; self.rd = allr(range(n))
        elif op.startswith(("buffer_load", "global_load")):
            self.kind = "vmem"
            if re.search(r"\blds\b", t) or "_lds_" in op:
                self.kind = "dma"; self.rd = allr(range(n)) | {("s", 124)}
            else:
                self.wr = R(0); self.rd = allr(range(1, n))
        elif op.startswith(("buffer_store", "global_store")):
            self.kind = "store"; self.rd = allr(range(n))
        elif op.startswith(("buffer_atomic", "global_atomic")):
            self.kind = "store"; self.rd = allr(range(n))
            if " sc0" in t: self.wr = R(0)
        elif op.startswith(("buffer_inv", "buffer_wbl2")):
            self.kind = "vmem"
        elif op.startswith("s_load") or op.startswith("s_memtime") or op.startswith("s_memrealtime"):
            self.kind = "smem"; self.wr = R(0); self.rd = allr(range(1, n))
        elif op.startswith("s_cmp") or op.startswith("s_bitcmp"):
            self.kind = "salu"; self.rd = allr(range(n))
        elif op.startswith(("s_cbranch", "s_branch", "s_barrier", "s_waitcnt", "s_endpgm", "s_setprio", "s_sleep", "s_setreg", "s_getreg", "s_sethalt")):
            self.kind = "ctrl"
            if op.startswith("s_getreg"): self.wr = R(0)
        elif op.startswith("s_"):
            self.kind = "salu"; self.wr = R(0); self.rd = allr(range(1, n))
            if "saveexec" in op: self.wr |= {("s", 126), ("s", 127)}
        else:
            raise ValueError("unknown op: " + text)

def vonly(s): return {r for r in s if r[0] == "v"}
def sonly(s): return {r for r in s if r[0] == "s"}

def required(prod, cons):
    req = 0
    pk, ck = prod.kind, cons.kind
    if pk == "valu":
        pw_v = vonly(prod.wr); pw_s = sonly(prod.wr)
        if ck == "mfma" and pw_v & cons.rd: req = max(req, 2)
        if ck == "valu":
            if prod.op in TRANS and cons.op not in TRANS and pw_v & (cons.rd | cons.wr & set()): req = max(req, 1)
            if prod.op in TRANS and pw_v & cons.rd: req = max(req, 1)
            if cons.op in ("v_readfirstlane_b32", "v_readlane_b32") and pw_v & cons.rd: req = max(req, 1)
            if cons.op.startswith("v_permlane") and pw_v & cons.rd: req = max(req, 2)
            if "dpp" in cons.text and pw_v & cons.rd: req = max(req, 2)
            if ("sdwa" in prod.op or "op_sel" in prod.text and not prod.op.startswith("v_pk")) and pw_v & (cons.rd | cons.wr): req = max(req, 1)
            if pw_s & sonly(cons.rd):
                req = max(req, 4 if cons.op in ("v_readlane_b32", "v_writelane_b32") else 2)
            if {("s", 126)} & pw_s: req = max(req, 4)
        if ck in ("vmem", "store", "dma") and pw_s & sonly(cons.rd): req = max(req, 5)
        if ck == "mfma" and {("s", 126)} & pw_s: req = max(req, 4)
        if ck == "salu" and pw_s & cons.rd: req = max(req, 1)
    if pk == "salu":
        if ("s", 124) in prod.wr and ck == "dma": req = max(req, 1)
    if pk == "mfma":
        P = prod.passes
        d = prod.wr
        if ck == "mfma":
            if d & cons.crd:
                if cons.crd == d and cons.passes == P: pass
                else: req = max(req, P + 2)
            if d & cons.abrd: req = max(req, P + 4)
            if d & cons.wr and not (cons.crd == d): req = max(req, P + 2)
        elif ck in ("valu", "ds", "vmem", "store", "dma"):
            if d & (cons.rd | cons.wr): req = max(req, P + 4)
        if ck == "valu" and prod.crd & vonly(cons.wr): req = max(req, P - 1)
    if pk == "store":
        wide = "x4" in prod.op or "x3" in prod.op
        if wide and vonly(prod.rd) & vonly(cons.wr):
            req = max(req, 2 if ck == "valu" else 1)
    return req

class Asm:
    def __init__(self):
        self.ins = []
        self.nops_added = 0
    def __call__(self, text):
        for line in text.strip("\n").split("\n"):
            line = line.rstrip()
            if line.strip() == "" or line.strip().startswith(";"):
                self.ins.append(Ins(""))
                self.ins[-1].text = line
                continue
            self.ins.append(Ins(line.strip()))
    def label(self, name): self(name + ":")
    def fix_hazards(self, verbose=False, window=24):
        out = []
        labels = {}
        def check(seq, cons):
            need = 0; dist = 0
            for prod in reversed(seq):
                if prod.kind in ("label", "directive"): continue
                r = required(prod, cons)
                if r > dist: need = max(need, r - dist)
                dist += prod.ws
                if dist >= window: break
            return need
        for ins in self.ins:
            if ins.kind in ("label", "directive"):
                if ins.kind == "label": labels[ins.label] = len(out)
                out.append(ins); continue
            need = check(out[-64:], ins)
            if need > 0:
                if verbose: print("hazard: +%d nop before: %s" % (need, ins.text))
                self.nops_added += 1
                while need > 0:
                    k = min(need, 16)
                    out.append(Ins("s_nop %d" % (k - 1))); need -= k
            out.append(ins)
        changed = True
        res = out
        it = 0
        while changed and it < 10:
            changed = False; it += 1
            labels = {x.label: i for i, x in enumerate(res) if x.kind == "label"}
            for i, ins in enumerate(res):
                if ins.kind == "ctrl" and ins.op.startswith(("s_cbranch", "s_branch")):
                    tgt = ins.ops[0]
                    if tgt not in labels: continue
                    j = labels[tgt]
                    pre = [x for x in res[max(0, i - 64):i + 1]]
                    seq = list(pre)
                    k = j; cnt = 0
                    while k < len(res) and cnt < window:
                        c = res[k]
                        if c.kind not in ("label", "directive"):
                            need = check(seq[-64:], c)
                            if need > 0:
                                if verbose: print("branch hazard: +%d nop at branch %s -> %s (%s)" % (need, ins.text, tgt, c.text))
                                nn = []
                                m = need
                                while m > 0:
                                    q = min(m, 16); nn.append(Ins("s_nop %d" % (q - 1))); m -= q
                                res = res[:i] + nn + res[i:]
                                changed = True
                                self.nops_added += 1
                                break
                            seq.append(c); cnt += c.ws
                            if c.kind == "ctrl" and c.op in ("s_branch", "s_endpgm"): break
                        k += 1
                    if changed: break
        self.ins = res
    def text(self):
        o = []
        for x in self.ins:
            if x.kind == "label": o.append(x.text)
            elif x.kind == "directive": o.append(x.text)
            else: o.append("    " + x.text)
        return "\n".join(o) + "\n"

def vr(lo, n=1):
    return "v%d" % lo if n == 1 else "v[%d:%d]" % (lo, lo + n - 1)
def sr(lo, n=1):
    return "s%d" % lo if n == 1 else "s[%d:%d]" % (lo, lo + n - 1)
```

```python
import sys, math
from asmlib import Asm, vr, sr

NAME = "parallel_sum__mha_block__dense_activation_gelu__prompt"
X_BYTES = 2048*896; WQKV_BYTES = 448*2688; WO_BYTES = 448*896; W1_BYTES = 448*3584
B1_BYTES = 3584; W2_BYTES = 1792*896; B2_BYTES = 896; OUT_BYTES = 2048*896
QF_OFF = 0; KV_OFF = 2<<20; HF_OFF = 6<<20; OF_OFF = 13<<20; WS_BYTES = 16<<20
LOG2E = 1.4426950408889634
CQ = LOG2E / math.sqrt(28.0)
GC0 = -2.0*math.sqrt(2.0/math.pi)*LOG2E
GC1 = GC0*0.044715
import struct
def f2u(f): return struct.unpack("<I", struct.pack("<f", f))[0]
def hexf(f): return "0x%08x" % f2u(f)

def srd(a, s, ptr, nbytes):
    a(f"s_mov_b32 s{s}, s{ptr}")
    a(f"s_and_b32 s{s+1}, s{ptr+1}, 0xffff")
    a(f"s_mov_b32 s{s+2}, {nbytes}")
    a(f"s_mov_b32 s{s+3}, 0x20000")

def wg_decode(a):
    a("s_and_b32 s23, s2, 7")
    a("s_lshr_b32 s24, s2, 3")
    a("s_and_b32 s20, s23, 1")
    a("s_lshl_b32 s20, s20, 3")
    a("s_and_b32 s25, s24, 7")
    a("s_add_u32 s20, s20, s25")
    a("s_lshr_b32 s21, s23, 1")
    a("s_lshl_b32 s21, s21, 2")
    a("s_lshr_b32 s25, s24, 3")
    a("s_add_u32 s21, s21, s25")
    a("v_lshrrev_b32 v2, 6, v0")
    a("v_and_b32 v1, 63, v0")
    a("v_readfirstlane_b32 s3, v2")
    a("s_and_b32 s22, s3, 3")

SLOT = 45056; XAUG = 3*SLOT; WAUG = XAUG + 4096; RSTD = WAUG + 7*1024; STDV = RSTD + 512; K1_LDS = STDV + 512

def gen_k1(a, kname):
    a.label(kname)
    a("s_cmp_ge_u32 s2, 256")
    a("s_cbranch_scc1 K1_END")
    a("s_load_dwordx4 s[36:39], s[0:1], 0")
    a("s_load_dwordx4 s[40:43], s[0:1], 32")
    a("s_load_dwordx2 s[44:45], s[0:1], 80")
    wg_decode(a)
    a("v_lshrrev_b32 v5, 3, v1")
    a("v_mul_u32_u24 v5, 896, v5")
    a("v_and_b32 v6, 7, v1")
    a("v_lshrrev_b32 v7, 4, v1")
    a("v_xor_b32 v8, v6, v7")
    a("v_lshl_add_u32 v3, v8, 4, v5")
    a("v_xor_b32 v8, 4, v8")
    a("v_lshl_add_u32 v4, v8, 4, v5")
    a("v_and_b32 v12, 31, v1")
    a("s_lshl_b32 s23, s22, 5")
    a("v_add_u32 v12, s23, v12")
    a("v_bfe_u32 v13, v12, 1, 3")
    a("v_lshrrev_b32 v14, 5, v1")
    a("v_xor_b32 v13, v13, v14")
    a("v_lshlrev_b32 v12, 7, v12")
    for ks in range(4):
        a(f"v_xor_b32 v14, {2*ks}, v13")
        a(f"v_lshl_add_u32 v{8+ks}, v14, 4, v12")
    a("v_lshrrev_b32 v12, 5, v1")
    a("v_lshlrev_b32 v12, 9, v12")
    a("v_bfe_u32 v13, v1, 2, 2")
    a("v_lshl_add_u32 v12, v13, 6, v12")
    a("v_bfe_u32 v13, v1, 4, 1")
    a("v_lshl_add_u32 v12, v13, 5, v12")
    a("v_and_b32 v13, 3, v1")
    a("v_lshl_add_u32 v12, v13, 3, v12")
    a("s_waitcnt lgkmcnt(0)")
    srd(a, 4, 36, X_BYTES)
    srd(a, 12, 44, WS_BYTES)
    srd(a, 16, 42, B1_BYTES)
    a("s_lshl_b32 s24, s20, 7")
    a("s_lshl_b32 s25, s3, 4")
    a("s_add_u32 s24, s24, s25")
    a("s_mul_i32 s24, s24, 896")
    a("s_add_u32 s25, s24, 7168")
    a("s_lshl_b32 s26, s3, 11")
    a("s_cmp_ge_u32 s3, 4")
    a("s_cbranch_scc1 K1_B")
    k1_wave(a, False)
    a.label("K1_B")
    k1_wave(a, True)
    a.label("K1_END")
    a("s_endpgm")

def k1_wave(a, isB):
    P = "K1B" if isB else "K1A"
    NT = 4 if isB else 3
    pitch = 3584 if isB else 2688
    NDMA = 2 + NT
    if isB: srd(a, 8, 40, W1_BYTES)
    else:   srd(a, 8, 38, WQKV_BYTES)
    a("v_lshrrev_b32 v5, 2, v1")
    a(f"s_mov_b32 s23, {pitch}")
    a("v_mul_lo_u32 v5, s23, v5")
    a("v_and_b32 v6, 3, v1")
    a("v_lshl_add_u32 v5, v6, 4, v5")
    a(f"s_mul_i32 s27, s22, {16*pitch}")
    if not isB:
        a("s_mul_i32 s28, s21, 56")
        a("s_add_u32 s28, s28, s27")
        a("s_add_u32 s29, s28, 896")
        a("s_add_u32 s30, s28, 1792")
    else:
        a("s_lshr_b32 s32, s21, 1")
        a("s_mul_i32 s32, s32, 7")
        a("s_and_b32 s33, s21, 1")
        a("s_lshl_b32 s33, s33, 2")
        a("s_add_u32 s33, s33, s32")
        a("s_lshl_b32 s28, s33, 6")
        a("s_add_u32 s28, s28, s27")
        a("s_add_u32 s29, s28, 64")
        a("s_add_u32 s30, s28, 128")
        a("s_add_u32 s31, s32, 3")
        a("s_lshl_b32 s31, s31, 6")
        a("s_add_u32 s31, s31, s27")
    tb = 3 if isB else 0
    a("s_lshl_b32 s34, s22, 10")
    a(f"s_add_u32 s34, s34, {16384 + tb*4096}")
    if not isB:
        a("s_and_b32 s23, s22, 1")
        a("s_lshl_b32 s23, s23, 12")
        a("s_add_u32 s23, s23, 16384")
        a("v_add_u32 v16, s23, v12")
        a("s_xor_b32 s23, s23, 4096")
        a("v_add_u32 v17, s23, v12")
        a("v_add_u32 v18, 0x%x, v12" % (16384+8192))
    else:
        for p in range(4):
            a(f"s_add_u32 s23, s22, {p}")
            a("s_and_b32 s23, s23, 3")
            a("s_lshl_b32 s23, s23, 12")
            a(f"s_add_u32 s23, s23, {16384 + 3*4096}")
            a(f"v_add_u32 v{16+p}, s23, v12")
    XF = [20, 24]
    WF = [[28 + 4*t for t in range(NT)], [44 + 4*t for t in range(NT)]]
    ACC = [64 + 16*t for t in range(NT)]
    VS, VQ, VC0, VC2 = 60, 61, 62, 63
    a("s_mov_b32 s35, 0x3f803f80")
    def dma(stage_slot_sgpr):
        a(f"s_add_u32 m0, s{stage_slot_sgpr}, s26")
        a("s_nop 0")
        a("buffer_load_dwordx4 v3, s[4:7], s24 offen lds")
        a("s_add_u32 m0, m0, 1024")
        a("s_nop 0")
        a("buffer_load_dwordx4 v4, s[4:7], s25 offen lds")
        a(f"s_add_u32 m0, s{stage_slot_sgpr}, s34")
        for t in range(NT):
            a("s_nop 0")
            a(f"buffer_load_dwordx4 v5, s[8:11], s{28+t} offen lds")
            if t < NT-1: a("s_add_u32 m0, m0, 4096")
        a("s_add_u32 s24, s24, 128")
        a("s_add_u32 s25, s25, 128")
        for t in range(NT):
            a(f"s_add_u32 s{28+t}, s{28+t}, {64*pitch}")
    for st in range(3):
        a(f"s_mov_b32 s46, {st*SLOT}")
        dma(46)
    for t in range(NT):
        for r in range(16): a(f"v_mov_b32 v{ACC[t]+r}, 0")
    for r in (VS, VQ, VC0, VC2): a(f"v_mov_b32 v{r}, 0")
    def reads(z, ks):
        a(f"ds_read_b128 {vr(XF[z],4)}, v{8+ks}")
        for t in range(NT):
            a(f"ds_read_b64_tr_b16 {vr(WF[z][t],2)}, v{16+t} offset:{ks*1024}")
            a(f"ds_read_b64_tr_b16 {vr(WF[z][t]+2,2)}, v{16+t} offset:{ks*1024+256}")
    NRD = 1 + 2*NT
    def compute(z):
        x = XF[z]
        for t in range(NT):
            w = WF[z][t]
            if (not isB) and t == 2:
                a(f"v_mfma_f32_32x32x16_bf16 {vr(ACC[t],16)}, {vr(x,4)}, {vr(w,4)}, {vr(ACC[t],16)}")
            else:
                a(f"v_mfma_f32_32x32x16_bf16 {vr(ACC[t],16)}, {vr(w,4)}, {vr(x,4)}, {vr(ACC[t],16)}")
            if t == 0:
                for r in range(4): a(f"v_dot2_f32_bf16 v{VC0}, v{w+r}, s35, v{VC0}")
            if not isB:
                if t == 1:
                    for r in range(4):
                        a(f"v_dot2_f32_bf16 v{VS}, v{x+r}, s35, v{VS}")
                        a(f"v_dot2_f32_bf16 v{VQ}, v{x+r}, v{x+r}, v{VQ}")
                if t == 2:
                    for r in range(4): a(f"v_dot2_f32_bf16 v{VC2}, v{w+r}, s35, v{VC2}")
    a(f"s_waitcnt vmcnt({2*NDMA})")
    a("s_barrier")
    reads(0, 0)
    a("s_mov_b32 s47, 0")
    a("s_mov_b32 s46, 0")
    a.label(f"{P}_LOOP")
    for ks in range(3):
        z = ks & 1
        reads(z ^ 1, ks+1)
        a(f"s_waitcnt lgkmcnt({min(NRD,15)})")
        compute(z)
    a("s_cmp_lt_u32 s47, 5")
    a(f"s_cbranch_scc1 {P}_W1")
    a("s_waitcnt vmcnt(0)")
    a.label(f"{P}_W1")
    a(f"s_waitcnt vmcnt({NDMA}) lgkmcnt(0)")
    a("s_barrier")
    a("s_cmp_lt_u32 s47, 4")
    a(f"s_cbranch_scc0 {P}_NODMA")
    dma(46)
    a.label(f"{P}_NODMA")
    a(f"s_add_u32 s48, s46, {SLOT}")
    a(f"s_cmp_ge_u32 s48, {3*SLOT}")
    a("s_cselect_b32 s48, 0, s48")
    a("s_sub_u32 s49, s48, s46")
    a("s_mov_b32 s46, s48")
    for r in list(range(8, 12)) + list(range(16, 16+NT)):
        a(f"v_add_u32 v{r}, s49, v{r}")
    a("s_cmp_lt_u32 s47, 6")
    a(f"s_cbranch_scc0 {P}_NORD")
    reads(0, 0)
    a.label(f"{P}_NORD")
    compute(1)
    a("s_add_u32 s47, s47, 1")
    a("s_cmp_lt_u32 s47, 7")
    a(f"s_cbranch_scc1 {P}_LOOP")
    T0, T1, T2, T3, T4 = 20, 21, 22, 23, 24
    a("v_lshlrev_b32 v6, 4, v1")
    a("v_cmp_gt_u32 vcc, 32, v1")
    def xhalf_add(r):
        a(f"v_mov_b32 v{T0}, v{r}")
        a(f"v_mov_b32 v{T1}, v{r}")
        a(f"v_permlane32_swap_b32 v{T0}, v{T1}")
        a(f"v_add_f32 v{r}, v{T0}, v{T1}")
    def waug_write(cs, tile_lds_sgpr_expr, bias_reg):
        xhalf_add(cs)
        a(f"v_cvt_pk_bf16_f32 v{T2}, v{cs}, v{cs}")
        a(f"v_and_b32 v{T2}, 0xffff0000, v{T2}")
        a(f"v_sub_f32 v{T3}, v{cs}, v{T2}")
        a(f"v_cvt_pk_bf16_f32 v28, v{T2}, v{T3}")
        a("v_mov_b32 v29, v28")
        if bias_reg is None: a("v_mov_b32 v30, 0")
        else: a(f"v_mov_b32 v30, v{bias_reg}")
        a("v_mov_b32 v31, 0")
        for r in range(28, 31): a(f"v_cndmask_b32 v{r}, 0, v{r}, vcc")
        a(f"v_add_u32 v{T4}, {tile_lds_sgpr_expr}, v6")
        a(f"ds_write_b128 v{T4}, v[28:31]")
    if not isB:
        xhalf_add(VS); xhalf_add(VQ)
        a(f"v_mul_f32 v{VS}, {hexf(1.0/448)}, v{VS}")
        a(f"v_mul_f32 v{VQ}, {hexf(1.0/448)}, v{VQ}")
        a(f"v_fma_f32 v{VQ}, -v{VS}, v{VS}, v{VQ}")
        a(f"v_max_f32 v{VQ}, 0, v{VQ}")
        a(f"v_add_f32 v{VQ}, {hexf(1e-5)}, v{VQ}")
        a(f"v_rsq_f32 v58, v{VQ}")
        a(f"v_mul_f32 v59, v{VQ}, v58")
        a(f"v_cvt_pk_bf16_f32 v{T2}, v{VS}, v{VS}")
        a(f"v_and_b32 v{T2}, 0xffff0000, v{T2}")
        a(f"v_sub_f32 v{T3}, v{VS}, v{T2}")
        a(f"v_cvt_pk_bf16_f32 v52, -v{T2}, -v{T2}")
        a(f"v_cvt_pk_bf16_f32 v53, -v{T3}, -v{T3}")
        a(f"v_cvt_pk_bf16_f32 v{T2}, v59, v59")
        a(f"v_and_b32 v{T2}, 0xffff0000, v{T2}")
        a(f"v_sub_f32 v{T3}, v59, v{T2}")
        a(f"v_cvt_pk_bf16_f32 v54, v{T2}, v{T3}")
        a("v_mov_b32 v55, 0")
        for r in range(52, 55): a(f"v_cndmask_b32 v{r}, 0, v{r}, vcc")
        a("s_lshl_b32 s23, s22, 10")
        a(f"s_add_u32 s23, s23, {XAUG}")
        a(f"v_add_u32 v{T4}, s23, v6")
        a(f"ds_write_b128 v{T4}, v[52:55]")
        a("v_and_b32 v7, 31, v1")
        a("s_lshl_b32 s23, s22, 7")
        a(f"s_add_u32 s23, s23, {RSTD}")
        a(f"v_lshl_add_u32 v{T4}, v7, 2, s23")
        a(f"ds_write_b32 v{T4}, v58")
        a(f"ds_write_b32 v{T4}, v59 offset:512")
        a("s_cmp_eq_u32 s22, 3")
        a("s_cbranch_scc1 K1A_NOCS")
        a("s_cmp_eq_u32 s22, 2")
        a("s_cbranch_scc0 K1A_CS0")
        a(f"v_mov_b32 v{VC0}, v{VC2}")
        a.label("K1A_CS0")
        a("s_lshl_b32 s23, s22, 10")
        a(f"s_add_u32 s23, s23, {WAUG}")
        waug_write(VC0, "s23", None)
        a.label("K1A_NOCS")
    else:
        a("s_add_u32 s23, s33, s22")
        a("s_add_u32 s50, s32, 3")
        a("s_cmp_eq_u32 s22, 3")
        a("s_cselect_b32 s23, s50, s23")
        a("s_lshl_b32 s23, s23, 6")
        a("v_and_b32 v7, 31, v1")
        a("v_lshlrev_b32 v7, 1, v7")
        a("buffer_load_ushort v56, v7, s[16:19], s23 offen")
        a("s_waitcnt vmcnt(0)")
        a("v_lshl_or_b32 v56, v56, 16, v56")
        a("s_lshl_b32 s23, s22, 10")
        a(f"s_add_u32 s23, s23, {WAUG + 3*1024}")
        waug_write(VC0, "s23", 56)
    a("s_waitcnt lgkmcnt(0)")
    a("s_barrier")
    if not isB:
        a("s_and_b32 s23, s22, 1")
        a("s_lshl_b32 s23, s23, 10")
        a(f"s_add_u32 s23, s23, {WAUG}")
        a(f"v_add_u32 v{T4}, s23, v6")
        a(f"ds_read_b128 v[28:31], v{T4}")
        a("s_xor_b32 s23, s23, 1024")
        a(f"v_add_u32 v{T4}, s23, v6")
        a(f"ds_read_b128 v[32:35], v{T4}")
        a(f"v_add_u32 v{T4}, {WAUG+2048}, v6")
        a(f"ds_read_b128 v[36:39], v{T4}")
        a("v_lshrrev_b32 v7, 5, v1")
        a("v_lshlrev_b32 v7, 4, v7")
        a("s_lshl_b32 s23, s22, 7")
        a(f"s_add_u32 s23, s23, {RSTD}")
        a("v_add_u32 v7, s23, v7")
        for g in range(4): a(f"ds_read_b128 {vr(112+4*g,4)}, v7 offset:{32*g}")
        a("s_waitcnt lgkmcnt(0)")
        a(f"v_mfma_f32_32x32x16_bf16 {vr(ACC[0],16)}, v[28:31], v[52:55], {vr(ACC[0],16)}")
        a(f"v_mfma_f32_32x32x16_bf16 {vr(ACC[1],16)}, v[32:35], v[52:55], {vr(ACC[1],16)}")
        a(f"v_mfma_f32_32x32x16_bf16 {vr(ACC[2],16)}, v[52:55], v[36:39], {vr(ACC[2],16)}")
        a(f"v_mul_f32 v57, {hexf(CQ)}, v58")
        mt_off_q = None
        a("s_lshl_b32 s50, s20, 2")
        a("s_add_u32 s50, s50, s22")
        a("s_lshl_b32 s51, s21, 6")
        a("s_add_u32 s51, s51, s50")
        a("s_lshl_b32 s52, s51, 11")
        a("s_lshl_b32 s53, s51, 12")
        a(f"s_add_u32 s53, s53, {KV_OFF}")
        a("v_cmp_le_u32 s[54:55], 32, v1")
        a("s_and_b32 s23, s22, 1")
        for pos in range(2):
            a(f"s_cmp_eq_u32 s23, {pos}")
            a("s_cselect_b32 s56, s52, s53")
            a(f"s_cselect_b32 s57, 0, 0x3f803f80")
            a(f"s_cselect_b32 s58, 0, 0x00003f80")
            a("s_cselect_b64 s[60:61], -1, 0")
            a("v_cndmask_b32 v59, v58, v57, s[60:61]")
            acc = ACC[pos]
            for r in range(16): a(f"v_mul_f32 v{acc+r}, v59, v{acc+r}")
            for r in range(8): a(f"v_cvt_pk_bf16_f32 v{20+r}, v{acc+2*r}, v{acc+2*r+1}")
            a("v_mov_b32 v28, s57")
            a("v_mov_b32 v29, s58")
            a("v_cndmask_b32 v26, v26, v28, s[54:55]")
            a("v_cndmask_b32 v27, v27, v29, s[54:55]")
            a("buffer_store_dwordx4 v[20:23], v6, s[12:15], s56 offen")
            a("buffer_store_dwordx4 v[24:27], v6, s[12:15], s56 offen offset:1024")
            a("s_nop 1")
        acc = ACC[2]
        for r in range(16): a(f"v_mul_f32 v{acc+r}, v{112+r}, v{acc+r}")
        for r in range(8): a(f"v_cvt_pk_bf16_f32 v{20+r}, v{acc+2*r}, v{acc+2*r+1}")
        a("v_and_b32 v7, 31, v1")
        a("v_cmp_le_u32 s[54:55], 28, v7")
        a("v_cmp_eq_u32 s[60:61], 28, v7")
        a("v_mov_b32 v28, 0")
        a("v_mov_b32 v29, 0x3f803f80")
        a("v_cndmask_b32 v28, v28, v29, s[60:61]")
        for r in range(8): a(f"v_cndmask_b32 v{20+r}, v{20+r}, v28, s[54:55]")
        a("buffer_store_dwordx4 v[20:23], v6, s[12:15], s53 offen offset:2048")
        a("buffer_store_dwordx4 v[24:27], v6, s[12:15], s53 offen offset:3072")
        a("s_waitcnt vmcnt(0)")
        a("s_endpgm")
    else:
        a("s_lshl_b32 s23, s22, 10")
        a(f"s_add_u32 s23, s23, {XAUG}")
        a(f"v_add_u32 v{T4}, s23, v6")
        a(f"ds_read_b128 v[52:55], v{T4}")
        for p in range(4):
            a(f"s_add_u32 s23, s22, {p}")
            a("s_and_b32 s23, s23, 3")
            a("s_lshl_b32 s23, s23, 10")
            a(f"s_add_u32 s23, s23, {WAUG+3*1024}")
            a(f"v_add_u32 v{T4}, s23, v6")
            a(f"ds_read_b128 {vr(28+4*p,4)}, v{T4}")
        a("v_and_b32 v7, 31, v1")
        a("s_lshl_b32 s23, s22, 7")
        a(f"s_add_u32 s23, s23, {RSTD}")
        a("v_lshl_add_u32 v7, v7, 2, s23")
        a("ds_read_b32 v58, v7")
        a("ds_read_b32 v59, v7 offset:512")
        a("s_waitcnt lgkmcnt(0)")
        for p in range(4):
            a(f"v_mfma_f32_32x32x16_bf16 {vr(ACC[p],16)}, {vr(28+4*p,4)}, v[52:55], {vr(ACC[p],16)}")
        a(f"v_mul_f32 v44, {hexf(GC0)}, v58")
        a("v_mul_f32 v45, v58, v58")
        a("v_mul_f32 v45, v45, v58")
        a(f"v_mul_f32 v45, {hexf(GC1)}, v45")
        a("s_lshl_b32 s50, s20, 2")
        a("s_add_u32 s50, s50, s22")
        a("s_mul_i32 s50, s50, 112*1024")
        a(f"s_add_u32 s50, s50, {HF_OFF}")
        a("s_and_b32 s51, s21, 1")
        a("s_lshr_b32 s52, s22, 1")
        a("s_cmp_eq_u32 s51, s52")
        a("s_cselect_b32 s53, 1, 0")
        for p in range(4):
            a(f"s_add_u32 s23, s22, {p}")
            a("s_and_b32 s23, s23, 3")
            a("s_add_u32 s54, s33, s23")
            a("s_add_u32 s55, s32, 3")
            a("s_cmp_eq_u32 s23, 3")
            a("s_cselect_b32 s54, s55, s54")
            a("s_cselect_b32 s55, s53, 1")
            a("s_lshl_b32 s54, s54, 11")
            a("s_add_u32 s54, s54, s50")
            a("s_cmp_eq_u32 s55, 0")
            a(f"s_cbranch_scc1 K1B_SKIP{p}")
            acc = ACC[p]
            for r in range(16):
                x = acc + r
                a(f"v_mul_f32 v46, v{x}, v{x}")
                a("v_fma_f32 v46, v46, v45, v44")
                a(f"v_mul_f32 v46, v{x}, v46")
                a("v_exp_f32 v46, v46")
                a("v_fma_f32 v46, v46, v59, v59")
                a("v_rcp_f32 v46, v46")
                a(f"v_mul_f32 v{x}, v{x}, v46")
            for r in range(8): a(f"v_cvt_pk_bf16_f32 v{20+r}, v{acc+2*r}, v{acc+2*r+1}")
            a("buffer_store_dwordx4 v[20:23], v6, s[12:15], s54 offen")
            a("buffer_store_dwordx4 v[24:27], v6, s[12:15], s54 offen offset:1024")
            a("s_nop 1")
            a.label(f"K1B_SKIP{p}")
        a("s_waitcnt vmcnt(0)")
        a("s_endpgm")


K2_SLOT = 32768; K2_XCH = 4*K2_SLOT; K2_LDS = K2_XCH + 4*4096

def gen_k2(a, kname):
    a.label(kname)
    a("s_cmp_ge_u32 s2, 256")
    a("s_cbranch_scc1 K2_END")
    a("s_load_dwordx2 s[44:45], s[0:1], 80")
    wg_decode(a)
    a("s_lshr_b32 s26, s3, 2")
    a("v_lshlrev_b32 v6, 4, v1")
    a("s_waitcnt lgkmcnt(0)")
    srd(a, 12, 44, WS_BYTES)
    a("s_lshl_b32 s24, s21, 6")
    a("s_lshl_b32 s25, s26, 5")
    a("s_add_u32 s24, s24, s25")
    a("s_add_u32 s24, s24, s22")
    a("s_lshl_b32 s24, s24, 12")
    a(f"s_add_u32 s24, s24, {KV_OFF}")
    a("s_lshl_b32 s27, s26, 14")
    a("s_lshl_b32 s25, s22, 12")
    a("s_add_u32 s27, s27, s25")
    def dma(slot_expr):
        a(f"s_add_u32 m0, s27, {slot_expr}")
        a("s_nop 0")
        for f in range(4):
            a(f"buffer_load_dwordx4 v6, s[12:15], s24 offen offset:{1024*f} lds")
        a("s_add_u32 s24, s24, 16384")
    QF = 8
    a("s_lshl_b32 s28, s20, 2")
    a("s_add_u32 s28, s28, s22")
    a("s_lshl_b32 s29, s21, 6")
    a("s_add_u32 s29, s29, s28")
    a("s_lshl_b32 s29, s29, 11")
    a(f"buffer_load_dwordx4 {vr(QF,4)}, v6, s[12:15], s29 offen")
    a(f"buffer_load_dwordx4 {vr(QF+4,4)}, v6, s[12:15], s29 offen offset:1024")
    for st in range(3): dma(st*K2_SLOT)
    KF = [16, 24]; VF = [32, 40]; P = 48; S = [64, 80]; O = 96
    VA, VN = 2, 3
    a("s_lshl_b32 s25, s26, 14")
    a(f"v_add_u32 v{VA}, s25, v6")
    a(f"v_add_u32 v{VN}, {K2_SLOT}, v{VA}")
    for r in range(16): a(f"v_mov_b32 v{O+r}, 0")
    for r in range(8):
        a(f"v_mov_b32 v{P+r}, 0")
        a(f"v_mov_b32 v{VF[1]+r}, 0")
    a("s_waitcnt vmcnt(8)")
    a("s_barrier")
    a(f"ds_read_b128 {vr(KF[1],4)}, v6")
    a(f"ds_read_b128 {vr(KF[1]+4,4)}, v6 offset:1024")
    a(f"ds_read_b128 {vr(KF[0],4)}, v{VA}")
    a(f"ds_read_b128 {vr(KF[0]+4,4)}, v{VA} offset:1024")
    a("s_waitcnt lgkmcnt(2)")
    a(f"v_mfma_f32_32x32x16_bf16 {vr(S[1],16)}, {vr(KF[1],4)}, {vr(QF,4)}, 0")
    a(f"v_mfma_f32_32x32x16_bf16 {vr(S[1],16)}, {vr(KF[1]+4,4)}, {vr(QF+4,4)}, {vr(S[1],16)}")
    s1 = S[1]
    a(f"v_max3_f32 v56, v{s1}, v{s1+1}, v{s1+2}")
    for r in range(3, 15, 2): a(f"v_max3_f32 v56, v56, v{s1+r}, v{s1+r+1}")
    a(f"v_max_f32 v56, v56, v{s1+15}")
    a("v_mov_b32 v57, v56")
    a("v_mov_b32 v58, v56")
    a("v_permlane32_swap_b32 v57, v58")
    a("v_max_f32 v56, v57, v58")
    def set_mref():
        a("v_cvt_pk_bf16_f32 v57, v56, v56")
        a("v_and_b32 v57, 0xffff0000, v57")
        a("v_sub_f32 v58, v56, v57")
        a("v_cvt_pk_bf16_f32 v59, v58, v58")
        a("v_and_b32 v59, 0xffff0000, v59")
        a("v_sub_f32 v58, v58, v59")
        a("v_cvt_pk_bf16_f32 v60, -v57, -v59")
        a("v_mov_b32 v61, 0")
        a("v_cvt_pk_bf16_f32 v61, -v58, v61")
        a("v_cmp_le_u32 vcc, 32, v1")
        a(f"v_cndmask_b32 v{QF+6}, v{QF+6}, v60, vcc")
        a(f"v_cndmask_b32 v{QF+7}, v{QF+7}, v61, vcc")
    set_mref()
    a("s_waitcnt lgkmcnt(0)")
    a(f"v_mfma_f32_32x32x16_bf16 {vr(S[0],16)}, {vr(KF[0],4)}, {vr(QF,4)}, 0")
    a(f"v_mfma_f32_32x32x16_bf16 {vr(S[0],16)}, {vr(KF[0]+4,4)}, {vr(QF+4,4)}, {vr(S[0],16)}")
    a(f"ds_read_b128 {vr(KF[1],4)}, v{VA} offset:4096")
    a(f"ds_read_b128 {vr(KF[1]+4,4)}, v{VA} offset:{4096+1024}")
    a(f"ds_read_b128 {vr(VF[0],4)}, v{VA} offset:2048")
    a(f"ds_read_b128 {vr(VF[0]+4,4)}, v{VA} offset:3072")
    a("s_mov_b32 s47, 0")
    a("s_mov_b32 s46, 0")
    a("s_nop 7")
    a.label("K2_LOOP")
    for t in range(4):
        z = t & 1
        sc = S[z]; sn = S[z ^ 1]
        if t == 2:
            a("s_cmp_lt_u32 s47, 6")
            a("s_cbranch_scc1 K2_W1")
            a("s_waitcnt vmcnt(0)")
            a.label("K2_W1")
            a("s_waitcnt vmcnt(4)")
            a("s_barrier")
            a("s_cmp_lt_u32 s47, 5")
            a("s_cbranch_scc0 K2_NODMA")
            a(f"s_add_u32 s48, s46, {3*K2_SLOT}")
            a(f"s_and_b32 s48, s48, {4*K2_SLOT-1}")
            dma("s48")
            a.label("K2_NODMA")
        def addr(tt, f):
            if tt < 4: return f"v{VA} offset:{tt*4096+f*1024}"
            return f"v{VN} offset:{(tt-4)*4096+f*1024}"
        E = lambda k: a(f"v_exp_f32 v{sc+k}, v{sc+k}")
        Pk = lambda k: a(f"v_cvt_pk_bf16_f32 v{P+k}, v{sc+2*k}, v{sc+2*k+1}")
        E(0); E(1)
        a(f"v_mfma_f32_32x32x16_bf16 {vr(O,16)}, {vr(VF[z^1]+4,4)}, {vr(P+4,4)}, {vr(O,16)}")
        a(f"ds_read_b128 {vr(KF[z],4)}, {addr(t+2,0)}")
        a(f"ds_read_b128 {vr(KF[z]+4,4)}, {addr(t+2,1)}")
        E(2); Pk(0); E(3); E(4); Pk(1)
        a("s_waitcnt lgkmcnt(4)")
        a(f"v_mfma_f32_32x32x16_bf16 {vr(sn,16)}, {vr(KF[z^1],4)}, {vr(QF,4)}, 0")
        a(f"ds_read_b128 {vr(VF[z^1],4)}, {addr(t+1,2)}")
        a(f"ds_read_b128 {vr(VF[z^1]+4,4)}, {addr(t+1,3)}")
        E(5); E(6); Pk(2); E(7); E(8); Pk(3)
        a(f"v_mfma_f32_32x32x16_bf16 {vr(sn,16)}, {vr(KF[z^1]+4,4)}, {vr(QF+4,4)}, {vr(sn,16)}")
        E(9); E(10); Pk(4); E(11)
        a("s_waitcnt lgkmcnt(4)")
        a(f"v_mfma_f32_32x32x16_bf16 {vr(O,16)}, {vr(VF[z],4)}, {vr(P,4)}, {vr(O,16)}")
        E(12); Pk(5); E(13); E(14); Pk(6); E(15)
        a("s_nop 0")
        Pk(7)
    a(f"s_add_u32 s46, s46, {K2_SLOT}")
    a(f"s_and_b32 s46, s46, {4*K2_SLOT-1}")
    a(f"v_mov_b32 v{VA}, v{VN}")
    a(f"s_add_u32 s48, s46, {K2_SLOT}")
    a(f"s_and_b32 s48, s48, {4*K2_SLOT-1}")
    a("s_lshl_b32 s25, s26, 14")
    a("s_add_u32 s48, s48, s25")
    a(f"v_add_u32 v{VN}, s48, v6")
    a("s_add_u32 s47, s47, 1")
    a("s_cmp_lt_u32 s47, 8")
    a("s_cbranch_scc1 K2_LOOP")
    a("s_waitcnt lgkmcnt(0)")
    a("s_nop 1")
    a(f"v_mfma_f32_32x32x16_bf16 {vr(O,16)}, {vr(VF[1]+4,4)}, {vr(P+4,4)}, {vr(O,16)}")
    a("s_lshl_b32 s25, s22, 12")
    a(f"s_add_u32 s25, s25, {K2_XCH}")
    a("v_add_u32 v7, s25, v6")
    a("s_cmp_eq_u32 s26, 0")
    a("s_cbranch_scc1 K2_LO")
    for q in range(4): a(f"ds_write_b128 v7, {vr(O+4*q,4)} offset:{1024*q}")
    a("s_waitcnt lgkmcnt(0)")
    a("s_barrier")
    a("s_endpgm")
    a.label("K2_LO")
    a("s_barrier")
    for q in range(4): a(f"ds_read_b128 {vr(64+4*q,4)}, v7 offset:{1024*q}")
    a("s_waitcnt lgkmcnt(0)")
    for r in range(16): a(f"v_add_f32 v{O+r}, v{O+r}, v{64+r}")
    a(f"v_mov_b32 v57, v{O+12}")
    a(f"v_mov_b32 v58, v{O+12}")
    a("v_permlane32_swap_b32 v57, v58")
    a("v_rcp_f32 v58, v58")
    a("v_cmp_gt_u32 vcc, 32, v1")
    a("v_cndmask_b32 v59, 0, v58, vcc")
    for r in range(12): a(f"v_mul_f32 v{O+r}, v58, v{O+r}")
    for r in range(12, 16): a(f"v_mul_f32 v{O+r}, v59, v{O+r}")
    for r in range(8): a(f"v_cvt_pk_bf16_f32 v{20+r}, v{O+2*r}, v{O+2*r+1}")
    a("s_lshl_b32 s29, s28, 4")
    a("s_add_u32 s29, s29, s21")
    a("s_lshl_b32 s29, s29, 11")
    a(f"s_add_u32 s29, s29, {OF_OFF}")
    a("buffer_store_dwordx4 v[20:23], v6, s[12:15], s29 offen")
    a("buffer_store_dwordx4 v[24:27], v6, s[12:15], s29 offen offset:1024")
    a("s_waitcnt vmcnt(0)")
    a.label("K2_END")
    a("s_endpgm")

K3_SLOT = 32768; K3_LDS = 3*K3_SLOT

def gen_k3(a, kname):
    a.label(kname)
    a("s_cmp_ge_u32 s2, 256")
    a("s_cbranch_scc1 K3_END")
    a("s_load_dwordx2 s[36:37], s[0:1], 0")
    a("s_load_dwordx2 s[38:39], s[0:1], 16")
    a("s_load_dwordx4 s[40:43], s[0:1], 48")
    a("s_load_dwordx2 s[50:51], s[0:1], 64")
    a("s_load_dwordx2 s[44:45], s[0:1], 80")
    a("s_and_b32 s23, s2, 7")
    a("s_lshr_b32 s24, s2, 3")
    a("s_and_b32 s25, s24, 3")
    a("s_lshl_b32 s20, s23, 2")
    a("s_add_u32 s20, s20, s25")
    a("s_lshr_b32 s21, s24, 2")
    a("v_lshrrev_b32 v2, 6, v0")
    a("v_and_b32 v1, 63, v0")
    a("v_readfirstlane_b32 s3, v2")
    a("s_and_b32 s22, s3, 3")
    a("s_lshr_b32 s26, s3, 2")
    a("v_lshlrev_b32 v6, 4, v1")
    a("v_lshrrev_b32 v5, 2, v1")
    a("v_mul_u32_u24 v5, 896, v5")
    a("v_and_b32 v7, 3, v1")
    a("v_lshl_add_u32 v5, v7, 4, v5")
    a("v_lshrrev_b32 v12, 5, v1")
    a("v_lshlrev_b32 v12, 8, v12")
    a("v_bfe_u32 v13, v1, 2, 2")
    a("v_lshl_add_u32 v12, v13, 6, v12")
    a("v_bfe_u32 v13, v1, 4, 1")
    a("v_lshl_add_u32 v12, v13, 5, v12")
    a("v_and_b32 v13, 3, v1")
    a("v_lshl_add_u32 v12, v13, 3, v12")
    a("s_lshl_b32 s23, s22, 13")
    a("v_add_u32 v12, s23, v12")
    a("s_waitcnt lgkmcnt(0)")
    srd(a, 4, 40, W2_BYTES)
    srd(a, 8, 38, WO_BYTES)
    srd(a, 12, 44, WS_BYTES)
    srd(a, 16, 36, X_BYTES)
    srd(a, 52, 42, B2_BYTES)
    srd(a, 56, 50, OUT_BYTES)
    a("s_lshl_b32 s27, s20, 1")
    a("s_add_u32 s27, s27, s26")
    a("s_mul_i32 s28, s27, 112")
    a("s_mul_i32 s23, s22, 28")
    a("s_add_u32 s28, s28, s23")
    a("s_lshl_b32 s28, s28, 10")
    a(f"s_add_u32 s28, s28, {HF_OFF}")
    a("s_lshl_b32 s29, s27, 15")
    a("s_lshl_b32 s23, s22, 13")
    a("s_add_u32 s29, s29, s23")
    a(f"s_add_u32 s29, s29, {OF_OFF}")
    a("s_mul_i32 s30, s22, 28")
    a("s_lshl_b32 s23, s26, 1")
    a("s_add_u32 s30, s30, s23")
    a(f"s_mul_i32 s30, s30, {16*896}")
    a("s_mul_i32 s31, s21, 112")
    a("s_add_u32 s30, s30, s31")
    a("s_lshl_b32 s32, s22, 2")
    a("s_add_u32 s32, s32, s26")
    a(f"s_mul_i32 s32, s32, {28*896}")
    a("s_add_u32 s32, s32, s31")
    a("s_lshl_b32 s33, s22, 13")
    a("s_lshl_b32 s23, s26, 12")
    a("s_add_u32 s33, s33, s23")
    AF = [64, 80, 96]
    WF = [[16, 20], [24, 28]]
    ACC = [32, 48]
    def issue(c):
        slot = (c % 3) * K3_SLOT
        for kk in range(2):
            for t in range(2):
                a(f"s_add_u32 m0, s33, {slot + kk*2048 + t*1024}")
                if c < 7:
                    off = (4*c + kk)*16*896 + 56*t
                    a(f"s_add_u32 s23, s30, {off}")
                    a("buffer_load_dwordx4 v5, s[4:7], s23 offen lds")
                else:
                    off = (2*(c-7)*28 + 16*kk)*896 + 56*t
                    a(f"s_add_u32 s23, s32, {off}")
                    a("buffer_load_dwordx4 v5, s[8:11], s23 offen lds")
        for j in range(4):
            if c < 7:
                a(f"s_add_u32 s23, s28, {(4*c+j)*1024}")
            else:
                a(f"s_add_u32 s23, s29, {(4*(c-7)+j)*1024}")
            a(f"buffer_load_dwordx4 {vr(AF[c%3]+4*j,4)}, v6, s[12:15], s23 offen")
    def reads(z, c, ks):
        base = (c % 3) * K3_SLOT + ks*2048
        for t in range(2):
            off = base + t*1024
            reg = 12
            if off + 512 > 65535:
                reg = 13; off -= 65536
            a(f"ds_read_b64_tr_b16 {vr(WF[z][t],2)}, v{reg} offset:{off}")
            a(f"ds_read_b64_tr_b16 {vr(WF[z][t]+2,2)}, v{reg} offset:{off+512}")
    def compute(z, c, ks):
        for t in range(2):
            a(f"v_mfma_f32_32x32x16_bf16 {vr(ACC[t],16)}, {vr(WF[z][t],4)}, {vr(AF[c%3]+4*ks,4)}, {vr(ACC[t],16)}")
    a("v_add_u32 v13, 0x10000, v12")
    for c in range(3): issue(c)
    for t in range(2):
        for r in range(16): a(f"v_mov_b32 v{ACC[t]+r}, 0")
    a("s_lshr_b32 s34, s22, 1")
    a("s_mul_i32 s34, s34, 56")
    a("s_add_u32 s34, s34, s31")
    a("s_and_b32 s35, s22, 1")
    a("s_lshl_b32 s35, s35, 5")
    a("s_add_u32 s34, s34, s35")
    a("v_lshrrev_b32 v7, 5, v1")
    a("v_lshlrev_b32 v7, 3, v7")
    a("v_add_u32 v7, s34, v7")
    a("v_and_b32 v8, 31, v1")
    a("s_lshl_b32 s23, s27, 5")
    a("v_add_u32 v8, s23, v8")
    a("v_mul_u32_u24 v8, 896, v8")
    a("v_add_u32 v8, v8, v7")
    a("v_add_u32 v9, 16, v8")
    a("v_add_u32 v10, 16, v7")
    a("s_cmp_eq_u32 s35, 32")
    a("s_cselect_b32 s23, 32, 64")
    a("v_cmp_le_u32 vcc, s23, v1")
    a("v_mov_b32 v11, 0x7fffff00")
    a("v_cndmask_b32 v9, v9, v11, vcc")
    a("v_cndmask_b32 v10, v10, v11, vcc")
    a("buffer_load_dwordx2 v[112:113], v8, s[16:19], 0 offen")
    a("buffer_load_dwordx2 v[114:115], v9, s[16:19], 0 offen")
    a("buffer_load_dwordx2 v[116:117], v7, s[52:55], 0 offen")
    a("buffer_load_dwordx2 v[118:119], v10, s[52:55], 0 offen")
    a("s_waitcnt vmcnt(20)")
    a("s_barrier")
    reads(0, 0, 0)
    for c in range(9):
        for ks in range(3):
            z = ks & 1
            reads(z ^ 1, c, ks+1)
            a("s_waitcnt lgkmcnt(4)")
            compute(z, c, ks)
        if c < 8:
            if c == 0: a("s_waitcnt vmcnt(12) lgkmcnt(0)")
            elif c + 2 <= 8: a("s_waitcnt vmcnt(8) lgkmcnt(0)")
            else: a("s_waitcnt vmcnt(0) lgkmcnt(0)")
            a("s_barrier")
            if c + 3 <= 8:
                pass
            reads(0, c+1, 0)
        else:
            a("s_waitcnt lgkmcnt(0)")
        compute(1, c, 3)
        if c + 3 <= 8: issue(c+3)
    a("s_barrier")
    a("s_lshl_b32 s23, s26, 15")
    a("s_lshl_b32 s24, s22, 11")
    a("s_add_u32 s23, s23, s24")
    a("v_add_u32 v14, s23, v6")
    for q in range(4):
        acc = ACC[q >> 1] + 8*(q & 1)
        a(f"s_cmp_eq_u32 s22, {q}")
        a(f"s_cbranch_scc1 K3_SKW{q}")
        a(f"ds_write_b128 v14, {vr(acc,4)} offset:{q*8192}")
        a(f"ds_write_b128 v14, {vr(acc+4,4)} offset:{q*8192+1024}")
        a(f"s_branch K3_SKX{q}")
        a.label(f"K3_SKW{q}")
        for r in range(8): a(f"v_mov_b32 v{64+r}, v{acc+r}")
        a.label(f"K3_SKX{q}")
    a("s_waitcnt lgkmcnt(0)")
    a("s_barrier")
    a("s_lshl_b32 s23, s26, 15")
    a("s_lshl_b32 s24, s22, 13")
    a("s_add_u32 s23, s23, s24")
    a("v_add_u32 v14, s23, v6")
    for i in range(1, 4):
        a(f"s_add_u32 s23, s22, {i}")
        a("s_and_b32 s23, s23, 3")
        a("s_lshl_b32 s23, s23, 11")
        a("v_add_u32 v15, s23, v14")
        a(f"ds_read_b128 {vr(72+8*(i-1),4)}, v15")
        a(f"ds_read_b128 {vr(76+8*(i-1),4)}, v15 offset:1024")
    a("s_waitcnt vmcnt(0) lgkmcnt(0)")
    for r in range(8):
        a(f"v_add_f32 v{64+r}, v{64+r}, v{72+r}")
        a(f"v_add_f32 v{80+r}, v{80+r}, v{88+r}")
    for r in range(8): a(f"v_add_f32 v{64+r}, v{64+r}, v{80+r}")
    for g in range(2):
        for w in range(2):
            for (src) in (112 + 2*g + w, 116 + 2*g + w):
                a(f"v_lshlrev_b32 v15, 16, v{src}")
                a(f"v_add_f32 v{64+4*g+2*w}, v{64+4*g+2*w}, v15")
                a(f"v_and_b32 v15, 0xffff0000, v{src}")
                a(f"v_add_f32 v{64+4*g+2*w+1}, v{64+4*g+2*w+1}, v15")
    for r in range(4): a(f"v_cvt_pk_bf16_f32 v{20+r}, v{64+2*r}, v{64+2*r+1}")
    a("buffer_store_dwordx2 v[20:21], v8, s[56:59], 0 offen")
    a("buffer_store_dwordx2 v[22:23], v9, s[56:59], 0 offen")
    a("s_waitcnt vmcnt(0)")
    a.label("K3_END")
    a("s_endpgm")

def kernel_desc(name, vgpr, sgpr=96):
    return f""".amdhsa_kernel {name}
  .amdhsa_next_free_vgpr {vgpr}
  .amdhsa_next_free_sgpr {sgpr}
  .amdhsa_accum_offset {(vgpr+3)//4*4}
  .amdhsa_group_segment_fixed_size 0
  .amdhsa_kernarg_size 88
  .amdhsa_user_sgpr_count 2
  .amdhsa_user_sgpr_kernarg_segment_ptr 1
  .amdhsa_system_sgpr_workgroup_id_x 1
  .amdhsa_float_denorm_mode_32 3
.end_amdhsa_kernel
"""

HEADER = open("cdna_kernels/%s.s.ref" % NAME).read().split("; Override launch")[0]

def main(out, kernels):
    txt = HEADER
    for (kn, grid, block, lds, fn, vg) in kernels:
        txt += f"; @launch kernel={kn} grid=({grid},1,1) block=({block},1,1) lds={lds}\n"
    txt += '.amdgcn_target "amdgcn-amd-amdhsa--gfx950"\n.text\n'
    for (kn, grid, block, lds, fn, vg) in kernels:
        a = Asm()
        fn(a, kn)
        a.fix_hazards(verbose=False)
        print(kn, "instructions:", sum(1 for x in a.ins if x.kind not in ("label","directive")), "nop fixes:", a.nops_added)
        txt += f".globl {kn}\n.p2align 8\n.type {kn},@function\n" + a.text()
    txt += '.section .rodata,"a"\n'
    for (kn, grid, block, lds, fn, vg) in kernels:
        txt += ".p2align 6\n" + kernel_desc(kn, vg)
    open(out, "w").write(txt)

if __name__ == "__main__":
    assert WAUG % 2048 == 0, WAUG
    ks = [("k1_kernel", 256, 512, K1_LDS, gen_k1, 128),
          ("k2_kernel", 256, 512, K2_LDS, gen_k2, 128),
          ("k3_kernel", 256, 512, K3_LDS, gen_k3, 128)]
    main(sys.argv[1] if len(sys.argv) > 1 else "k.s", ks)
```

```python
import sys, math, os, struct
from asmlib import Asm, vr, sr

NAME = "parallel_sum__mha_block__dense_activation_gelu__prompt"
KNAME = NAME + "_kernel"
X_BYTES = 2048*896; WQKV_BYTES = 448*2688; WO_BYTES = 448*896; W1_BYTES = 448*3584
B1_BYTES = 3584; W2_BYTES = 1792*896; B2_BYTES = 896; OUT_BYTES = 2048*896
QF_OFF = 0; KV_OFF = 2<<20; HF_OFF = 6<<20; OF_OFF = 13<<20
STAMP_OFF = 15<<20
REC_OFF = 16<<20; CSP_OFF = REC_OFF + 65536; FLG_OFF = (16<<20) + (512<<10); EPOCH_OFF = FLG_OFF + 32768
WS_BYTES = 17<<20
G_F0R, G_F0C, G_FQ, G_FH, G_FO = 0, 16, 32, 48, 64
LOG2E = 1.4426950408889634
CQ = LOG2E / math.sqrt(28.0)
GC0 = -2.0*math.sqrt(2.0/math.pi)*LOG2E
GC1 = GC0*0.044715
def f2u(f): return struct.unpack("<I", struct.pack("<f", f))[0]
def hexf(f): return "0x%08x" % f2u(f)
STAMP = int(os.environ.get("STAMP", "0"))
ABL = os.environ.get("ABL", "")
NVGPR = 128
SV = 248

def stamp(a, slot, tmp=88):
    if not STAMP: return
    a(f"s_memrealtime s[{tmp}:{tmp+1}]")
    a(f"s_memtime s[{tmp+2}:{tmp+3}]")
    a(f"s_lshl_b32 s{tmp+7}, s2, 3")
    a(f"s_add_u32 s{tmp+6}, s3, s{tmp+7}")
    a(f"s_lshl_b32 s{tmp+6}, s{tmp+6}, 8")
    a(f"s_add_u32 s{tmp+6}, s{tmp+6}, {STAMP_OFF + slot*16}")
    a("s_waitcnt lgkmcnt(0)")
    a(f"v_mov_b32 v{SV}, s{tmp}")
    a(f"v_mov_b32 v{SV+1}, s{tmp+1}")
    a(f"v_mov_b32 v{SV+2}, s{tmp+2}")
    a(f"v_mov_b32 v{SV+3}, s{tmp+3}")
    a(f"v_mov_b32 v{SV+4}, 0")
    a(f"s_mov_b64 s[{tmp}:{tmp+1}], exec")
    a("s_mov_b64 exec, 1")
    a(f"buffer_store_dwordx4 v[{SV}:{SV+3}], v{SV+4}, s[12:15], s{tmp+6} offen")
    a(f"s_mov_b64 exec, s[{tmp}:{tmp+1}]")
    a("s_nop 1")

def srd(a, s, ptr, nbytes):
    a(f"s_mov_b32 s{s}, s{ptr}")
    a(f"s_and_b32 s{s+1}, s{ptr+1}, 0xffff")
    a(f"s_mov_b32 s{s+2}, {nbytes}")
    a(f"s_mov_b32 s{s+3}, 0x20000")

TAG = 56
uid = [0]
def L(p):
    uid[0] += 1
    return f"{p}_{uid[0]}"

def poll(a, voff, tmp_v):
    lp = L("POLL"); ld = L("POLLD")
    a("s_mov_b32 s57, 0")
    a.label(lp)
    a(f"buffer_load_dword v{tmp_v}, v{voff}, s[12:15], 0 offen sc0 sc1")
    a("s_waitcnt vmcnt(0)")
    a(f"v_cmp_ne_u32 vcc, s{TAG}, v{tmp_v}")
    a("s_nop 1")
    a("s_cmp_eq_u64 vcc, 0")
    a(f"s_cbranch_scc1 {ld}")
    a("s_add_u32 s57, s57, 1")
    a("s_cmp_gt_u32 s57, 0x40000")
    a(f"s_cbranch_scc1 {ld}")
    a("s_sleep 2")
    a(f"s_branch {lp}")
    a.label(ld)

def set_flag(a, soff_sgpr, tv):
    a(f"v_mov_b32 v{tv}, s{TAG}")
    a(f"v_mov_b32 v{tv+1}, 0")
    a("s_mov_b64 s[58:59], exec")
    a("s_mov_b64 exec, 1")
    a(f"buffer_store_dword v{tv}, v{tv+1}, s[12:15], s{soff_sgpr} offen sc0 sc1")
    a("s_mov_b64 exec, s[58:59]")

SLOT = 45056; MISC = 3*SLOT
TRS = MISC
CNT = 163840 - 256
LDS_BYTES = 163840

def wg_signal(a, cnt_idx, nwaves, flag_soff_sgprs, tv):
    done = L("SIG")
    a(f"v_mov_b32 v{tv}, {CNT + 4*cnt_idx}")
    a(f"v_mov_b32 v{tv+1}, 1")
    a("s_mov_b64 s[58:59], exec")
    a("s_mov_b64 exec, 1")
    a(f"ds_add_rtn_u32 v{tv+2}, v{tv}, v{tv+1}")
    a("s_waitcnt lgkmcnt(0)")
    a(f"v_readfirstlane_b32 s57, v{tv+2}")
    a("s_mov_b64 exec, s[58:59]")
    a(f"s_cmp_eq_u32 s57, {nwaves-1}")
    a(f"s_cbranch_scc0 {done}")
    for s in flag_soff_sgprs: set_flag(a, s, tv)
    a.label(done)

def gen(a):
    a.label(KNAME)
    a("s_cmp_ge_u32 s2, 256")
    a("s_cbranch_scc1 K_END")
    a("s_load_dwordx4 s[36:39], s[0:1], 0")
    a("s_load_dwordx2 s[40:41], s[0:1], 16")
    a("s_load_dwordx8 s[44:51], s[0:1], 32")
    a("s_load_dwordx2 s[52:53], s[0:1], 64")
    a("s_load_dwordx2 s[54:55], s[0:1], 80")
    a("s_and_b32 s23, s2, 7")
    a("s_lshr_b32 s24, s2, 3")
    a("s_and_b32 s20, s23, 1")
    a("s_lshl_b32 s20, s20, 3")
    a("s_and_b32 s25, s24, 7")
    a("s_add_u32 s20, s20, s25")
    a("s_lshr_b32 s21, s23, 1")
    a("s_lshl_b32 s21, s21, 2")
    a("s_lshr_b32 s25, s24, 3")
    a("s_add_u32 s21, s21, s25")
    a("v_lshrrev_b32 v2, 6, v0")
    a("v_and_b32 v1, 63, v0")
    a("v_readfirstlane_b32 s3, v2")
    a("v_lshlrev_b32 v6, 4, v1")
    a("s_and_b32 s22, s3, 3")
    a("s_lshr_b32 s26, s3, 2")
    a(f"v_mov_b32 v2, {CNT}")
    a("v_lshl_add_u32 v2, v1, 2, v2")
    a("v_mov_b32 v3, 0")
    a("ds_write_b32 v2, v3")
    a("s_waitcnt lgkmcnt(0)")
    srd(a, 4, 36, X_BYTES)
    srd(a, 12, 54, WS_BYTES)
    srd(a, 16, 46, B1_BYTES)
    a(f"s_add_u32 s58, s54, {EPOCH_OFF}")
    a("s_addc_u32 s59, s55, 0")
    a(f"s_load_dword s{TAG}, s[58:59], 0")
    stamp(a, 0)
    a("s_cmp_ge_u32 s3, 4")
    a("s_cbranch_scc1 AB_B")
    phase_ab(a, False)
    a("s_branch PH_C")
    a.label("AB_B")
    phase_ab(a, True)
    a.label("PH_C")
    phase_c(a)
    phase_d(a)
    a.label("K_END")
    a("s_endpgm")

def phase_ab(a, isB):
    P = "ABB" if isB else "ABA"
    NT = 4 if isB else 3
    pitch = 3584 if isB else 2688
    NDMA = 2 + NT
    if isB: srd(a, 8, 44, W1_BYTES)
    else:   srd(a, 8, 38, WQKV_BYTES)
    if not isB:
        a("s_mul_i32 s28, s21, 168")
        a("s_add_u32 s29, s28, 56")
        a("s_add_u32 s30, s28, 112")
    else:
        a("s_lshr_b32 s32, s21, 1")
        a("s_mul_i32 s32, s32, 7")
        a("s_and_b32 s33, s21, 1")
        a("s_lshl_b32 s33, s33, 2")
        a("s_add_u32 s33, s33, s32")
        a("s_lshl_b32 s28, s33, 6")
        a("s_add_u32 s29, s28, 64")
        a("s_add_u32 s30, s28, 128")
        a("s_add_u32 s31, s32, 3")
        a("s_lshl_b32 s31, s31, 6")
    a("s_lshl_b32 s60, s20, 7")
    a("s_lshl_b32 s61, s21, 3")
    a("s_add_u32 s60, s60, s61")
    a("s_add_u32 s60, s60, s3")
    a("s_mul_i32 s61, s60, 896")
    a("v_mov_b32 v7, 0x7fffff00")
    a("v_cmp_gt_u32 vcc, 56, v1")
    a("v_cndmask_b32 v7, v7, v6, vcc")
    a("buffer_load_dwordx4 v[20:23], v7, s[4:7], s61 offen")
    a("v_lshrrev_b32 v8, 4, v1")
    a(f"s_mov_b32 s23, {7*pitch}")
    a("v_mul_lo_u32 v8, s23, v8")
    a("v_and_b32 v9, 15, v1")
    a("v_lshl_add_u32 v8, v9, 2, v8")
    a("s_mov_b32 s62, s28")
    a("s_cmp_eq_u32 s22, 1"); a("s_cselect_b32 s62, s29, s62")
    a("s_cmp_eq_u32 s22, 2"); a("s_cselect_b32 s62, s30, s62")
    if isB:
        a("s_cmp_eq_u32 s22, 3"); a("s_cselect_b32 s62, s31, s62")
    a(f"s_mul_i32 s63, s20, {28*pitch}")
    a("s_add_u32 s62, s62, s63")
    for r in range(7):
        a(f"s_add_u32 s63, s62, {r*pitch}")
        a(f"buffer_load_dword v{24+r}, v8, s[8:11], s63 offen")
    NP0 = 8
    a("v_lshrrev_b32 v5, 3, v1")
    a("v_mul_u32_u24 v5, 896, v5")
    a("v_and_b32 v9, 7, v1")
    a("v_lshrrev_b32 v10, 4, v1")
    a("v_xor_b32 v9, v9, v10")
    a("v_lshl_add_u32 v3, v9, 4, v5")
    a("v_xor_b32 v9, 4, v9")
    a("v_lshl_add_u32 v4, v9, 4, v5")
    a("v_lshrrev_b32 v5, 2, v1")
    a(f"s_mov_b32 s23, {pitch}")
    a("v_mul_lo_u32 v5, s23, v5")
    a("v_and_b32 v9, 3, v1")
    a("v_lshl_add_u32 v5, v9, 4, v5")
    a("s_lshl_b32 s24, s20, 7")
    a("s_lshl_b32 s25, s3, 4")
    a("s_add_u32 s24, s24, s25")
    a("s_mul_i32 s24, s24, 896")
    a("s_add_u32 s25, s24, 7168")
    a("s_lshl_b32 s27, s3, 11")
    a(f"s_mul_i32 s23, s22, {16*pitch}")
    for t in range(NT): a(f"s_add_u32 s{64+t}, s{28+t}, s23")
    tb = 3 if isB else 0
    a("s_lshl_b32 s34, s22, 10")
    a(f"s_add_u32 s34, s34, {16384 + tb*4096}")
    def dma(slot_sgpr):
        a(f"s_add_u32 m0, s{slot_sgpr}, s27")
        a("s_nop 0")
        a("buffer_load_dwordx4 v3, s[4:7], s24 offen lds")
        a("s_add_u32 m0, m0, 1024")
        a("s_add_u32 s24, s24, 128")
        a("buffer_load_dwordx4 v4, s[4:7], s25 offen lds")
        a(f"s_add_u32 m0, s{slot_sgpr}, s34")
        a("s_add_u32 s25, s25, 128")
        for t in range(NT):
            a(f"buffer_load_dwordx4 v5, s[8:11], s{64+t} offen lds")
            if t < NT-1: a("s_add_u32 m0, m0, 4096")
            a(f"s_add_u32 s{64+t}, s{64+t}, {64*pitch}")
    for st in range(3):
        a(f"s_mov_b32 s46, {st*SLOT}")
        dma(46)
    a("v_and_b32 v12, 31, v1")
    a("s_lshl_b32 s23, s22, 5")
    a("v_add_u32 v12, s23, v12")
    a("v_bfe_u32 v13, v12, 1, 3")
    a("v_lshrrev_b32 v14, 5, v1")
    a("v_xor_b32 v13, v13, v14")
    a("v_lshlrev_b32 v12, 7, v12")
    for ks in range(4):
        a(f"v_xor_b32 v14, {2*ks}, v13")
        a(f"v_lshl_add_u32 v{8+ks}, v14, 4, v12")
    a("v_lshrrev_b32 v12, 5, v1")
    a("v_lshlrev_b32 v12, 9, v12")
    a("v_bfe_u32 v13, v1, 2, 2")
    a("v_lshl_add_u32 v12, v13, 6, v12")
    a("v_bfe_u32 v13, v1, 4, 1")
    a("v_lshl_add_u32 v12, v13, 5, v12")
    a("v_and_b32 v13, 3, v1")
    a("v_lshl_add_u32 v12, v13, 3, v12")
    for t in range(NT): a(f"v_add_u32 v{16+t}, {16384 + (tb+t)*4096}, v12")
    XF = [32, 36]
    WF = [[40 + 4*t for t in range(NT)], [112 + 4*t for t in range(NT)]] if not isB else None
    XF = [20, 24]
    WF = [[28 + 4*t for t in range(NT)], [44 + 4*t for t in range(NT)]]
    ACC = [64 + 16*t for t in range(NT)]
    for t in range(NT):
        for r in range(16): a(f"v_mov_b32 v{ACC[t]+r}, 0")
    a(f"s_waitcnt vmcnt({3*NDMA}) lgkmcnt(0)")
    a(f"s_add_u32 s{TAG}, s{TAG}, 1")
    a("v_mov_b32 v13, 0"); a("v_mov_b32 v14, 0")
    for d in range(4):
        a(f"v_lshlrev_b32 v15, 16, v{20+d}")
        a(f"v_and_b32 v31, 0xffff0000, v{20+d}")
        a("v_add_f32 v13, v13, v15")
        a("v_fmac_f32 v14, v15, v15")
        a("v_add_f32 v13, v13, v31")
        a("v_fmac_f32 v14, v31, v31")
    for ctl in ("quad_perm:[1,0,3,2]", "quad_perm:[2,3,0,1]", "row_half_mirror", "row_mirror"):
        a(f"v_add_f32_dpp v13, v13, v13 {ctl} row_mask:0xf bank_mask:0xf")
        a(f"v_add_f32_dpp v14, v14, v14 {ctl} row_mask:0xf bank_mask:0xf")
    for (reg, sb) in ((13, 68), (14, 72)):
        for q in range(4): a(f"v_readlane_b32 s{sb+q}, v{reg}, {16*q}")
    a("v_mov_b32 v13, s68"); a("v_mov_b32 v14, s72")
    for q in range(1, 4):
        a(f"v_add_f32 v13, s{68+q}, v13")
        a(f"v_add_f32 v14, s{72+q}, v14")
    a(f"v_mul_f32 v13, {hexf(1.0/448)}, v13")
    a(f"v_mul_f32 v14, {hexf(1.0/448)}, v14")
    a("v_fma_f32 v14, -v13, v13, v14")
    a("v_max_f32 v14, 0, v14")
    a(f"v_add_f32 v14, {hexf(1e-5)}, v14")
    a("v_rsq_f32 v36, v14")
    a("v_mul_f32 v37, v14, v36")
    a("v_cvt_pk_bf16_f32 v15, v13, v13")
    a("v_and_b32 v15, 0xffff0000, v15")
    a("v_sub_f32 v31, v13, v15")
    a("v_cvt_pk_bf16_f32 v32, -v15, -v15")
    a("v_cvt_pk_bf16_f32 v33, -v31, -v31")
    a("v_cvt_pk_bf16_f32 v15, v37, v37")
    a("v_and_b32 v15, 0xffff0000, v15")
    a("v_sub_f32 v31, v37, v15")
    a("v_cvt_pk_bf16_f32 v34, v15, v31")
    a("v_mov_b32 v35, 0")
    a("v_mov_b32 v38, 0"); a("v_mov_b32 v39, 0")
    a("s_lshl_b32 s61, s60, 5")
    a(f"s_add_u32 s61, s61, {REC_OFF}")
    a("v_mov_b32 v15, 0")
    a("s_mov_b64 s[58:59], exec")
    a("s_mov_b64 exec, 1")
    a("buffer_store_dwordx4 v[32:35], v15, s[12:15], s61 offen sc1")
    a("buffer_store_dwordx4 v[36:39], v15, s[12:15], s61 offen offset:16 sc1")
    a("s_mov_b64 exec, s[58:59]")
    skipcs = L("NOCS")
    a("v_mov_b32 v40, 0"); a("v_mov_b32 v41, 0")
    for r in range(7):
        a(f"v_lshlrev_b32 v15, 16, v{24+r}")
        a(f"v_and_b32 v31, 0xffff0000, v{24+r}")
        a("v_add_f32 v40, v40, v15")
        a("v_add_f32 v41, v41, v31")
    for reg in (40, 41):
        a(f"v_mov_b32 v42, v{reg}"); a(f"v_mov_b32 v43, v{reg}")
        a("v_permlane32_swap_b32 v42, v43")
        a(f"v_add_f32 v{reg}, v42, v43")
        a(f"v_mov_b32 v42, v{reg}"); a(f"v_mov_b32 v43, v{reg}")
        a("v_permlane16_swap_b32 v42, v43")
        a(f"v_add_f32 v{reg}, v42, v43")
    a("s_lshl_b32 s61, s21, 4")
    a("s_add_u32 s61, s61, s20")
    a("s_mul_i32 s61, s61, 896")
    a("s_lshl_b32 s63, s22, 7")
    a("s_add_u32 s61, s61, s63")
    a(f"s_add_u32 s61, s61, {CSP_OFF + tb*128}")
    if not isB:
        a("s_cmp_eq_u32 s22, 3")
        a("s_cselect_b32 s61, 0x7fffff00, s61")
    a("v_and_b32 v15, 15, v1")
    a("v_lshlrev_b32 v15, 3, v15")
    a("s_mov_b64 s[58:59], exec")
    a("s_mov_b64 exec, 0xffff")
    a("buffer_store_dwordx2 v[40:41], v15, s[12:15], s61 offen sc1")
    a("s_mov_b64 exec, s[58:59]")
    a.label(skipcs)
    NS = 3
    a("s_lshl_b32 s74, s20, 8"); a("s_lshl_b32 s63, s21, 2"); a("s_add_u32 s74, s74, s63")
    a(f"s_add_u32 s74, s74, {FLG_OFF + G_F0R*256}")
    a("s_lshl_b32 s75, s21, 8"); a("s_lshl_b32 s63, s20, 2"); a("s_add_u32 s75, s75, s63")
    a(f"s_add_u32 s75, s75, {FLG_OFF + G_F0C*256}")
    stamp(a, 1)
    def reads(z, ks):
        a(f"ds_read_b128 {vr(XF[z],4)}, v{8+ks}")
        for t in range(NT):
            a(f"ds_read_b64_tr_b16 {vr(WF[z][t],2)}, v{16+t} offset:{ks*1024}")
            a(f"ds_read_b64_tr_b16 {vr(WF[z][t]+2,2)}, v{16+t} offset:{ks*1024+256}")
    NRD = 1 + 2*NT
    def compute(z):
        x = XF[z]
        for t in range(NT):
            w = WF[z][t]
            a(f"v_mfma_f32_32x32x16_bf16 {vr(ACC[t],16)}, {vr(w,4)}, {vr(x,4)}, {vr(ACC[t],16)}")
    a(f"s_waitcnt vmcnt({2*NDMA + NS + (1 if STAMP else 0)})")
    a("s_barrier")
    reads(0, 0)
    a("s_mov_b32 s47, 0")
    a("s_mov_b32 s46, 0")
    a.label(f"{P}_LOOP")
    for ks in range(3):
        z = ks & 1
        reads(z ^ 1, ks+1)
        a(f"s_waitcnt lgkmcnt({min(NRD,15)})")
        compute(z)
    a("s_cmp_eq_u32 s47, 0")
    a(f"s_cbranch_scc0 {P}_W0")
    a(f"s_waitcnt vmcnt({NDMA + NS + (1 if STAMP else 0)}) lgkmcnt(0)")
    a(f"s_branch {P}_W2")
    a.label(f"{P}_W0")
    a("s_cmp_lt_u32 s47, 5")
    a(f"s_cbranch_scc1 {P}_W1")
    a("s_waitcnt vmcnt(0)")
    a.label(f"{P}_W1")
    a(f"s_waitcnt vmcnt({NDMA}) lgkmcnt(0)")
    a("s_cmp_eq_u32 s47, 1")
    a(f"s_cbranch_scc0 {P}_W2")
    wg_signal(a, 0, 8, [74, 75], 60)
    a.label(f"{P}_W2")
    a("s_barrier")
    a("s_cmp_lt_u32 s47, 4")
    a(f"s_cbranch_scc0 {P}_NODMA")
    dma(46)
    a.label(f"{P}_NODMA")
    a(f"s_add_u32 s23, s46, {SLOT}")
    a(f"s_cmp_ge_u32 s23, {3*SLOT}")
    a("s_cselect_b32 s23, 0, s23")
    a("s_sub_u32 s35, s23, s46")
    a("s_mov_b32 s46, s23")
    for r in list(range(8, 12)) + list(range(16, 16+NT)):
        a(f"v_add_u32 v{r}, s35, v{r}")
    a("s_cmp_lt_u32 s47, 6")
    a(f"s_cbranch_scc0 {P}_NORD")
    reads(0, 0)
    a.label(f"{P}_NORD")
    compute(1)
    a("s_add_u32 s47, s47, 1")
    a("s_cmp_lt_u32 s47, 7")
    a(f"s_cbranch_scc1 {P}_LOOP")
    stamp(a, 2)
    a("v_and_b32 v7, 15, v1")
    a("v_lshlrev_b32 v7, 2, v7")
    a("s_lshl_b32 s61, s20, 8"); a(f"s_add_u32 s61, s61, {FLG_OFF + G_F0R*256}")
    a("s_lshl_b32 s62, s21, 8"); a(f"s_add_u32 s62, s62, {FLG_OFF + G_F0C*256}")
    a("v_mov_b32 v8, s61"); a("v_mov_b32 v9, s62")
    a("v_cmp_gt_u32 vcc, 32, v1")
    a("v_cndmask_b32 v8, v9, v8, vcc")
    a("v_add_u32 v7, v7, v8")
    poll(a, 7, 8)
    a("v_and_b32 v7, 31, v1")
    a("v_lshlrev_b32 v7, 5, v7")
    a("s_lshl_b32 s61, s20, 2"); a("s_add_u32 s61, s61, s22")
    a("s_lshl_b32 s62, s61, 10")
    a(f"s_add_u32 s62, s62, {REC_OFF}")
    a("buffer_load_dwordx4 v[52:55], v7, s[12:15], s62 offen sc1")
    a("buffer_load_dwordx2 v[58:59], v7, s[12:15], s62 offen offset:16 sc1")
    a("v_and_b32 v7, 31, v1")
    a("v_lshlrev_b32 v7, 2, v7")
    a("v_lshrrev_b32 v8, 5, v1")
    a(f"v_mul_u32_u24 v8, {8*896}, v8")
    a("v_add_u32 v7, v7, v8")
    a("s_mul_i32 s62, s21, 16*896")
    a(f"s_add_u32 s62, s62, {CSP_OFF + tb*128}")
    CS = 20
    a("v_cmp_gt_u32 vcc, 32, v1")
    if isB:
        a("v_and_b32 v8, 31, v1"); a("v_lshlrev_b32 v8, 1, v8")
        for t in range(4):
            a(f"buffer_load_ushort v{60+t}, v8, s[16:19], s{28+t} offen")
    for t in range(NT):
        for q in range(8):
            a(f"s_add_u32 s63, s62, {t*128 + q*896}")
            a(f"buffer_load_dword v{CS+q}, v7, s[12:15], s63 offen sc1")
        a("s_waitcnt vmcnt(0)")
        a(f"v_add_f32 v{CS}, v{CS}, v{CS+1}"); a(f"v_add_f32 v{CS+2}, v{CS+2}, v{CS+3}")
        a(f"v_add_f32 v{CS+4}, v{CS+4}, v{CS+5}"); a(f"v_add_f32 v{CS+6}, v{CS+6}, v{CS+7}")
        a(f"v_add_f32 v{CS}, v{CS}, v{CS+2}"); a(f"v_add_f32 v{CS+4}, v{CS+4}, v{CS+6}")
        a(f"v_add_f32 v{CS}, v{CS}, v{CS+4}")
        a(f"v_mov_b32 v{CS+1}, v{CS}"); a(f"v_mov_b32 v{CS+2}, v{CS}")
        a(f"v_permlane32_swap_b32 v{CS+1}, v{CS+2}")
        a(f"v_add_f32 v{CS}, v{CS+1}, v{CS+2}")
        a(f"v_cvt_pk_bf16_f32 v{CS+1}, v{CS}, v{CS}")
        a(f"v_and_b32 v{CS+1}, 0xffff0000, v{CS+1}")
        a(f"v_sub_f32 v{CS+2}, v{CS}, v{CS+1}")
        wa = 28 + 4*t
        a(f"v_cvt_pk_bf16_f32 v{wa}, v{CS+1}, v{CS+2}")
        a(f"v_cndmask_b32 v{wa}, 0, v{wa}, vcc")
        a(f"v_mov_b32 v{wa+1}, v{wa}")
        if isB:
            a(f"v_lshl_or_b32 v{wa+2}, v{60+t}, 16, v{60+t}")
            a(f"v_cndmask_b32 v{wa+2}, 0, v{wa+2}, vcc")
        else:
            a(f"v_mov_b32 v{wa+2}, 0")
        a(f"v_mov_b32 v{wa+3}, 0")
    for r in range(52, 55): a(f"v_cndmask_b32 v{r}, 0, v{r}, vcc")
    a("v_mov_b32 v55, 0")
    for t in range(NT):
        a(f"v_mfma_f32_32x32x16_bf16 {vr(ACC[t],16)}, {vr(28+4*t,4)}, v[52:55], {vr(ACC[t],16)}")
    if not isB:
        a(f"v_mul_f32 v57, {hexf(CQ)}, v58")
        a("v_cmp_le_u32 s[70:71], 32, v1")
        a("s_lshl_b32 s63, s22, 11"); a(f"s_add_u32 s63, s63, {TRS}")
        a("v_and_b32 v7, 31, v1"); a("v_lshlrev_b32 v7, 6, v7")
        a("v_lshrrev_b32 v8, 5, v1"); a("v_lshl_add_u32 v7, v8, 3, v7")
        a("v_add_u32 v7, s63, v7")
        a("v_lshrrev_b32 v9, 5, v1"); a("v_lshlrev_b32 v9, 8, v9")
        a("v_bfe_u32 v10, v1, 2, 2"); a("v_lshl_add_u32 v9, v10, 6, v9")
        a("v_bfe_u32 v10, v1, 4, 1"); a("v_lshl_add_u32 v9, v10, 5, v9")
        a("v_and_b32 v10, 3, v1"); a("v_lshl_add_u32 v9, v10, 3, v9")
        a("v_add_u32 v9, s63, v9")
        for pos in range(3):
            lq, lk, lv, le = L("EQ"), L("EK"), L("EV"), L("EE")
            a("s_mul_i32 s64, s21, 3"); a(f"s_add_u32 s64, s64, {pos}")
            a("s_lshr_b32 s65, s64, 4"); a("s_and_b32 s64, s64, 15")
            a("s_lshl_b32 s66, s64, 6"); a("s_add_u32 s66, s66, s61")
            acc = ACC[pos]
            a("s_cmp_eq_u32 s65, 0")
            a("s_cselect_b64 s[72:73], -1, 0")
            a("v_cndmask_b32 v56, v58, v57, s[72:73]")
            for r in range(16): a(f"v_mul_f32 v{acc+r}, v56, v{acc+r}")
            for r in range(8): a(f"v_cvt_pk_bf16_f32 v{20+r}, v{acc+2*r}, v{acc+2*r+1}")
            a("s_mov_b32 s67, 0"); a("s_mov_b32 s68, 0")
            a("s_cmp_eq_u32 s65, 1")
            a("s_cselect_b32 s67, 0x3f803f80, s67"); a("s_cselect_b32 s68, 0x00003f80, s68")
            a("s_cmp_eq_u32 s65, 2")
            a("s_cselect_b32 s67, 0x00003f80, s67")
            a("v_mov_b32 v28, s67"); a("v_mov_b32 v29, s68")
            a("v_cndmask_b32 v26, v26, v28, s[70:71]")
            a("v_cndmask_b32 v27, v27, v29, s[70:71]")
            a(f"s_cbranch_scc1 {lv}")
            a("s_lshl_b32 s67, s66, 11")
            a("s_lshl_b32 s68, s66, 12"); a(f"s_add_u32 s68, s68, {KV_OFF}")
            a("s_cmp_eq_u32 s65, 0")
            a("s_cselect_b32 s67, s67, s68")
            a("buffer_store_dwordx4 v[20:23], v6, s[12:15], s67 offen sc1")
            a("buffer_store_dwordx4 v[24:27], v6, s[12:15], s67 offen offset:1024 sc1")
            a(f"s_branch {le}")
            a.label(lv)
            for g in range(4): a(f"ds_write_b64 v7, {vr(20+2*g,2)} offset:{16*g}")
            a("s_waitcnt lgkmcnt(0)")
            for f in range(2):
                a(f"ds_read_b64_tr_b16 {vr(40+4*f,2)}, v9 offset:{1024*f}")
                a(f"ds_read_b64_tr_b16 {vr(40+4*f+2,2)}, v9 offset:{1024*f+512}")
            a("s_lshl_b32 s68, s66, 12"); a(f"s_add_u32 s68, s68, {KV_OFF+2048}")
            a("s_waitcnt lgkmcnt(0)")
            a("buffer_store_dwordx4 v[40:43], v6, s[12:15], s68 offen sc1")
            a("buffer_store_dwordx4 v[44:47], v6, s[12:15], s68 offen offset:1024 sc1")
            a.label(le)
            a("s_nop 1")
        a("s_waitcnt vmcnt(0)")
        a("s_lshl_b32 s62, s21, 8"); a("s_lshl_b32 s63, s20, 2"); a("s_add_u32 s62, s62, s63")
        a(f"s_add_u32 s62, s62, {FLG_OFF + G_FQ*256}")
        wg_signal(a, 1, 4, [62], 40)
    else:
        a(f"v_mul_f32 v44, {hexf(GC0)}, v58")
        a("v_mul_f32 v45, v58, v58")
        a("v_mul_f32 v45, v45, v58")
        a(f"v_mul_f32 v45, {hexf(GC1)}, v45")
        a("s_mul_i32 s64, s61, 112*1024")
        a(f"s_add_u32 s64, s64, {HF_OFF}")
        a("s_and_b32 s65, s21, 1"); a("s_lshr_b32 s66, s22, 1")
        for t in range(4):
            sk = L("HSK")
            if t == 3:
                a("s_cmp_eq_u32 s65, s66")
                a(f"s_cbranch_scc0 {sk}")
            a(f"s_lshl_b32 s67, s{28+t}, 5")
            a("s_add_u32 s67, s67, s64")
            acc = ACC[t]
            for r in range(16):
                x = acc + r
                a(f"v_mul_f32 v46, v{x}, v{x}")
                a("v_fma_f32 v46, v46, v45, v44")
                a(f"v_mul_f32 v46, v{x}, v46")
                a("v_exp_f32 v46, v46")
                a("v_fma_f32 v46, v46, v59, v59")
                a("v_rcp_f32 v46, v46")
                a(f"v_mul_f32 v{x}, v{x}, v46")
            for r in range(8): a(f"v_cvt_pk_bf16_f32 v{20+r}, v{acc+2*r}, v{acc+2*r+1}")
            a("buffer_store_dwordx4 v[20:23], v6, s[12:15], s67 offen sc1")
            a("buffer_store_dwordx4 v[24:27], v6, s[12:15], s67 offen offset:1024 sc1")
            a("s_nop 1")
            a.label(sk)
        a("s_waitcnt vmcnt(0)")
        a("s_lshl_b32 s62, s20, 8"); a("s_lshl_b32 s63, s21, 2"); a("s_add_u32 s62, s62, s63")
        a(f"s_add_u32 s62, s62, {FLG_OFF + G_FH*256}")
        wg_signal(a, 2, 4, [62], 40)
    stamp(a, 3)

C_SLOT = 32768; C_XCH = 4*C_SLOT
def phase_c(a):
    nopoll = L("CNP")
    a("s_cmp_eq_u32 s3, 0")
    a(f"s_cbranch_scc0 {nopoll}")
    a("s_add_u32 s60, s21, 16"); a("s_mul_i32 s60, s60, 171"); a("s_lshr_b32 s60, s60, 9")
    a("s_add_u32 s61, s21, 32"); a("s_mul_i32 s61, s61, 171"); a("s_lshr_b32 s61, s61, 9")
    a("s_mul_i32 s62, s21, 171"); a("s_lshr_b32 s62, s62, 9")
    a("s_lshl_b32 s60, s60, 8"); a("s_lshl_b32 s61, s61, 8"); a("s_lshl_b32 s62, s62, 8")
    a("s_lshl_b32 s63, s20, 2"); a("s_add_u32 s62, s62, s63")
    a("v_and_b32 v7, 15, v1"); a("v_lshlrev_b32 v7, 2, v7")
    a("v_add_u32 v8, s60, v7"); a("v_add_u32 v9, s61, v7"); a("v_mov_b32 v10, s62")
    a("v_cmp_gt_u32 vcc, 16, v1"); a("v_cndmask_b32 v7, v9, v8, vcc")
    a("v_cmp_gt_u32 vcc, 32, v1"); a("v_cndmask_b32 v7, v10, v7, vcc")
    a(f"v_add_u32 v7, {FLG_OFF + G_FQ*256}, v7")
    poll(a, 7, 8)
    a.label(nopoll)
    a("s_barrier")
    stamp(a, 4)
    a("s_lshl_b32 s24, s21, 6")
    a("s_lshl_b32 s25, s26, 5")
    a("s_add_u32 s24, s24, s25")
    a("s_add_u32 s24, s24, s22")
    a("s_lshl_b32 s24, s24, 12")
    a(f"s_add_u32 s24, s24, {KV_OFF}")
    a("s_lshl_b32 s27, s26, 14")
    a("s_lshl_b32 s25, s22, 12")
    a("s_add_u32 s27, s27, s25")
    def dma(slot_expr):
        a(f"s_add_u32 m0, s27, {slot_expr}")
        a("s_nop 0")
        for f in range(4):
            a(f"buffer_load_dwordx4 v6, s[12:15], s24 offen offset:{1024*f} sc1 lds")
        a("s_add_u32 s24, s24, 16384")
    QF = 8
    a("s_lshl_b32 s28, s20, 2")
    a("s_add_u32 s28, s28, s22")
    a("s_lshl_b32 s29, s21, 6")
    a("s_add_u32 s29, s29, s28")
    a("s_lshl_b32 s29, s29, 11")
    a(f"buffer_load_dwordx4 {vr(QF,4)}, v6, s[12:15], s29 offen sc1")
    a(f"buffer_load_dwordx4 {vr(QF+4,4)}, v6, s[12:15], s29 offen offset:1024 sc1")
    for st in range(3): dma(st*C_SLOT)
    KF = [16, 24]; VF = [32, 40]; P = 48; S = [64, 80]; O = 96
    VA, VN = 2, 3
    a("s_lshl_b32 s25, s26, 14")
    a(f"v_add_u32 v{VA}, s25, v6")
    a(f"v_add_u32 v{VN}, {C_SLOT}, v{VA}")
    for r in range(16): a(f"v_mov_b32 v{O+r}, 0")
    for r in range(8):
        a(f"v_mov_b32 v{P+r}, 0")
        a(f"v_mov_b32 v{VF[1]+r}, 0")
    a("s_waitcnt vmcnt(8)")
    a("s_barrier")
    a(f"ds_read_b128 {vr(KF[1],4)}, v6")
    a(f"ds_read_b128 {vr(KF[1]+4,4)}, v6 offset:1024")
    a(f"ds_read_b128 {vr(KF[0],4)}, v{VA}")
    a(f"ds_read_b128 {vr(KF[0]+4,4)}, v{VA} offset:1024")
    a("s_waitcnt lgkmcnt(2)")
    a(f"v_mfma_f32_32x32x16_bf16 {vr(S[1],16)}, {vr(KF[1],4)}, {vr(QF,4)}, 0")
    a(f"v_mfma_f32_32x32x16_bf16 {vr(S[1],16)}, {vr(KF[1]+4,4)}, {vr(QF+4,4)}, {vr(S[1],16)}")
    s1 = S[1]
    a(f"v_max3_f32 v56, v{s1}, v{s1+1}, v{s1+2}")
    for r in range(3, 15, 2): a(f"v_max3_f32 v56, v56, v{s1+r}, v{s1+r+1}")
    a(f"v_max_f32 v56, v56, v{s1+15}")
    a("v_mov_b32 v57, v56"); a("v_mov_b32 v58, v56")
    a("v_permlane32_swap_b32 v57, v58")
    a("v_max_f32 v56, v57, v58")
    a("v_cvt_pk_bf16_f32 v57, v56, v56")
    a("v_and_b32 v57, 0xffff0000, v57")
    a("v_sub_f32 v58, v56, v57")
    a("v_cvt_pk_bf16_f32 v59, v58, v58")
    a("v_and_b32 v59, 0xffff0000, v59")
    a("v_sub_f32 v58, v58, v59")
    a("v_cvt_pk_bf16_f32 v60, -v57, -v59")
    a("v_mov_b32 v61, 0")
    a("v_cvt_pk_bf16_f32 v61, -v58, v61")
    a("v_cmp_le_u32 vcc, 32, v1")
    a(f"v_cndmask_b32 v{QF+6}, v{QF+6}, v60, vcc")
    a(f"v_cndmask_b32 v{QF+7}, v{QF+7}, v61, vcc")
    a("s_waitcnt lgkmcnt(0)")
    a(f"v_mfma_f32_32x32x16_bf16 {vr(S[0],16)}, {vr(KF[0],4)}, {vr(QF,4)}, 0")
    a(f"v_mfma_f32_32x32x16_bf16 {vr(S[0],16)}, {vr(KF[0]+4,4)}, {vr(QF+4,4)}, {vr(S[0],16)}")
    a(f"ds_read_b128 {vr(KF[1],4)}, v{VA} offset:4096")
    a(f"ds_read_b128 {vr(KF[1]+4,4)}, v{VA} offset:{4096+1024}")
    a(f"ds_read_b128 {vr(VF[0],4)}, v{VA} offset:2048")
    a(f"ds_read_b128 {vr(VF[0]+4,4)}, v{VA} offset:3072")
    a("s_mov_b32 s47, 0")
    a("s_mov_b32 s46, 0")
    stamp(a, 5)
    a.label("C_LOOP")
    for t in range(4):
        z = t & 1
        sc = S[z]; sn = S[z ^ 1]
        if t == 2:
            a("s_cmp_lt_u32 s47, 6")
            a("s_cbranch_scc1 C_W1")
            a("s_waitcnt vmcnt(0)")
            a.label("C_W1")
            a("s_waitcnt vmcnt(4)")
            a("s_barrier")
            a("s_cmp_lt_u32 s47, 5")
            a("s_cbranch_scc0 C_NODMA")
            a(f"s_add_u32 s23, s46, {3*C_SLOT}")
            a(f"s_and_b32 s23, s23, {4*C_SLOT-1}")
            dma("s23")
            a.label("C_NODMA")
        def addr(tt, f):
            if tt < 4: return f"v{VA} offset:{tt*4096+f*1024}"
            return f"v{VN} offset:{(tt-4)*4096+f*1024}"
        E = lambda k: a(f"v_exp_f32 v{sc+k}, v{sc+k}")
        Pk = lambda k: a(f"v_cvt_pk_bf16_f32 v{P+k}, v{sc+2*k}, v{sc+2*k+1}")
        E(0); E(1)
        a(f"v_mfma_f32_32x32x16_bf16 {vr(O,16)}, {vr(VF[z^1]+4,4)}, {vr(P+4,4)}, {vr(O,16)}")
        a(f"ds_read_b128 {vr(KF[z],4)}, {addr(t+2,0)}")
        a(f"ds_read_b128 {vr(KF[z]+4,4)}, {addr(t+2,1)}")
        E(2); Pk(0); E(3); E(4); Pk(1)
        a("s_waitcnt lgkmcnt(4)")
        a(f"v_mfma_f32_32x32x16_bf16 {vr(sn,16)}, {vr(KF[z^1],4)}, {vr(QF,4)}, 0")
        a(f"ds_read_b128 {vr(VF[z^1],4)}, {addr(t+1,2)}")
        a(f"ds_read_b128 {vr(VF[z^1]+4,4)}, {addr(t+1,3)}")
        E(5); E(6); Pk(2); E(7); E(8); Pk(3)
        a(f"v_mfma_f32_32x32x16_bf16 {vr(sn,16)}, {vr(KF[z^1]+4,4)}, {vr(QF+4,4)}, {vr(sn,16)}")
        E(9); E(10); Pk(4); E(11)
        a("s_waitcnt lgkmcnt(4)")
        a(f"v_mfma_f32_32x32x16_bf16 {vr(O,16)}, {vr(VF[z],4)}, {vr(P,4)}, {vr(O,16)}")
        E(12); Pk(5); E(13); E(14); Pk(6); E(15)
        a("s_nop 0")
        Pk(7)
    a(f"s_add_u32 s46, s46, {C_SLOT}")
    a(f"s_and_b32 s46, s46, {4*C_SLOT-1}")
    a(f"v_mov_b32 v{VA}, v{VN}")
    a(f"s_add_u32 s23, s46, {C_SLOT}")
    a(f"s_and_b32 s23, s23, {4*C_SLOT-1}")
    a("s_lshl_b32 s25, s26, 14")
    a("s_add_u32 s23, s23, s25")
    a(f"v_add_u32 v{VN}, s23, v6")
    a("s_add_u32 s47, s47, 1")
    a("s_cmp_lt_u32 s47, 8")
    a("s_cbranch_scc1 C_LOOP")
    stamp(a, 6)
    a("s_waitcnt lgkmcnt(0)")
    a("s_nop 1")
    a(f"v_mfma_f32_32x32x16_bf16 {vr(O,16)}, {vr(VF[1]+4,4)}, {vr(P+4,4)}, {vr(O,16)}")
    a("s_lshl_b32 s25, s22, 12")
    a(f"s_add_u32 s25, s25, {C_XCH}")
    a("v_add_u32 v7, s25, v6")
    a("s_cmp_eq_u32 s26, 0")
    a("s_cbranch_scc1 C_LO")
    for q in range(4): a(f"ds_write_b128 v7, {vr(O+4*q,4)} offset:{1024*q}")
    a("s_waitcnt lgkmcnt(0)")
    a("s_barrier")
    a("s_branch C_DONE")
    a.label("C_LO")
    a("s_barrier")
    for q in range(4): a(f"ds_read_b128 {vr(64+4*q,4)}, v7 offset:{1024*q}")
    a("s_waitcnt lgkmcnt(0)")
    for r in range(16): a(f"v_add_f32 v{O+r}, v{O+r}, v{64+r}")
    a(f"v_mov_b32 v57, v{O+12}"); a(f"v_mov_b32 v58, v{O+12}")
    a("v_permlane32_swap_b32 v57, v58")
    a("v_rcp_f32 v58, v58")
    a("v_cmp_gt_u32 vcc, 32, v1")
    a("v_cndmask_b32 v59, 0, v58, vcc")
    for r in range(12): a(f"v_mul_f32 v{O+r}, v58, v{O+r}")
    for r in range(12, 16): a(f"v_mul_f32 v{O+r}, v59, v{O+r}")
    for r in range(8): a(f"v_cvt_pk_bf16_f32 v{20+r}, v{O+2*r}, v{O+2*r+1}")
    a("s_lshl_b32 s29, s28, 4")
    a("s_add_u32 s29, s29, s21")
    a("s_lshl_b32 s29, s29, 11")
    a(f"s_add_u32 s29, s29, {OF_OFF}")
    a("buffer_store_dwordx4 v[20:23], v6, s[12:15], s29 offen sc1")
    a("buffer_store_dwordx4 v[24:27], v6, s[12:15], s29 offen offset:1024 sc1")
    a("s_waitcnt vmcnt(0)")
    a("s_lshl_b32 s62, s20, 8"); a("s_lshl_b32 s63, s21, 2"); a("s_add_u32 s62, s62, s63")
    a(f"s_add_u32 s62, s62, {FLG_OFF + G_FO*256}")
    wg_signal(a, 3, 4, [62], 40)
    a.label("C_DONE")
    stamp(a, 7)

D_SLOT = 32768
def phase_d(a):
    a("s_and_b32 s23, s2, 7")
    a("s_lshr_b32 s24, s2, 3")
    a("s_and_b32 s25, s24, 3")
    a("s_lshl_b32 s20, s23, 2")
    a("s_add_u32 s20, s20, s25")
    a("s_lshr_b32 s21, s24, 2")
    a("s_cmp_eq_u32 s21, 7")
    a("s_cbranch_scc1 K_END")
    srd(a, 4, 48, W2_BYTES)
    srd(a, 8, 40, WO_BYTES)
    srd(a, 16, 36, X_BYTES)
    srd(a, 60, 50, B2_BYTES)
    srd(a, 64, 52, OUT_BYTES)
    a("v_lshrrev_b32 v5, 5, v1"); a("v_lshlrev_b32 v5, 2, v5")
    a("v_bfe_u32 v7, v1, 2, 2"); a("v_add_u32 v5, v5, v7")
    a("v_mul_u32_u24 v5, 896, v5")
    a("v_bfe_u32 v7, v1, 4, 1"); a("v_lshl_add_u32 v5, v7, 6, v5")
    a("v_and_b32 v7, 3, v1"); a("v_lshl_add_u32 v5, v7, 4, v5")
    a("v_lshrrev_b32 v12, 5, v1"); a("v_lshlrev_b32 v12, 9, v12")
    a("v_bfe_u32 v13, v1, 2, 2"); a("v_lshl_add_u32 v12, v13, 6, v12")
    a("v_bfe_u32 v13, v1, 4, 1"); a("v_lshl_add_u32 v12, v13, 5, v12")
    a("v_and_b32 v13, 3, v1"); a("v_lshl_add_u32 v12, v13, 3, v12")
    a("s_lshl_b32 s23, s22, 13")
    a("v_add_u32 v12, s23, v12")
    a("v_add_u32 v13, 0x10000, v12")
    a("s_lshl_b32 s27, s20, 1"); a("s_add_u32 s27, s27, s26")
    a("s_mul_i32 s28, s27, 112"); a("s_mul_i32 s23, s22, 28"); a("s_add_u32 s28, s28, s23")
    a("s_lshl_b32 s28, s28, 10"); a(f"s_add_u32 s28, s28, {HF_OFF}")
    a("s_lshl_b32 s29, s27, 15"); a("s_lshl_b32 s23, s22, 13"); a("s_add_u32 s29, s29, s23")
    a(f"s_add_u32 s29, s29, {OF_OFF}")
    a("s_mul_i32 s30, s22, 28"); a("s_lshl_b32 s23, s26, 1"); a("s_add_u32 s30, s30, s23")
    a(f"s_mul_i32 s30, s30, {16*896}")
    a("s_lshl_b32 s31, s21, 7")
    a("s_add_u32 s30, s30, s31")
    a("s_lshl_b32 s32, s22, 2"); a("s_add_u32 s32, s32, s26")
    a(f"s_mul_i32 s32, s32, {28*896}")
    a("s_add_u32 s32, s32, s31")
    a("s_lshl_b32 s33, s22, 13"); a("s_lshl_b32 s23, s26, 12"); a("s_add_u32 s33, s33, s23")
    AF = [64, 80, 96]
    WF = [[16, 20], [24, 28]]
    ACC = [32, 48]
    def issue(c):
        slot = (c % 3) * D_SLOT
        for kk in range(2):
            for hh in range(2):
                a(f"s_add_u32 m0, s33, {slot + kk*2048 + hh*1024}")
                if c < 7:
                    off = ((4*c + kk)*16 + 8*hh)*896
                    a(f"s_add_u32 s23, s30, {off}")
                    a("buffer_load_dwordx4 v5, s[4:7], s23 offen lds")
                else:
                    off = (2*(c-7)*28 + 16*kk + 8*hh)*896
                    a(f"s_add_u32 s23, s32, {off}")
                    a("buffer_load_dwordx4 v5, s[8:11], s23 offen lds")
        for j in range(4):
            if c < 7: a(f"s_add_u32 s23, s28, {(4*c+j)*1024}")
            else:     a(f"s_add_u32 s23, s29, {(4*(c-7)+j)*1024}")
            a(f"buffer_load_dwordx4 {vr(AF[c%3]+4*j,4)}, v6, s[12:15], s23 offen sc1")
    def reads(z, c, ks):
        base = (c % 3) * D_SLOT + ks*2048
        for t in range(2):
            off = base + t*256
            reg = 12
            if off + 1024 > 65535:
                reg = 13; off -= 65536
            a(f"ds_read_b64_tr_b16 {vr(WF[z][t],2)}, v{reg} offset:{off}")
            a(f"ds_read_b64_tr_b16 {vr(WF[z][t]+2,2)}, v{reg} offset:{off+1024}")
    def compute(z, c, ks):
        for t in range(2):
            a(f"v_mfma_f32_32x32x16_bf16 {vr(ACC[t],16)}, {vr(WF[z][t],4)}, {vr(AF[c%3]+4*ks,4)}, {vr(ACC[t],16)}")
    def pollgrp(g):
        a("s_lshr_b32 s23, s20, 1"); a("s_lshl_b32 s23, s23, 8")
        a(f"s_add_u32 s23, s23, {FLG_OFF + g*256}")
        a("v_and_b32 v7, 15, v1"); a("v_lshlrev_b32 v7, 2, v7"); a("v_add_u32 v7, s23, v7")
        poll(a, 7, 14)
    np1 = L("DNP")
    a("s_cmp_eq_u32 s3, 0")
    a(f"s_cbranch_scc0 {np1}")
    pollgrp(G_FH)
    a.label(np1)
    a("s_barrier")
    stamp(a, 8)
    for c in range(3): issue(c)
    for t in range(2):
        for r in range(16): a(f"v_mov_b32 v{ACC[t]+r}, 0")
    a("s_lshr_b32 s34, s22, 1"); a("s_lshl_b32 s34, s34, 6"); a("s_add_u32 s34, s34, s31")
    a("s_and_b32 s35, s22, 1"); a("s_lshl_b32 s35, s35, 5"); a("s_add_u32 s34, s34, s35")
    a("v_lshrrev_b32 v7, 5, v1"); a("v_lshlrev_b32 v7, 3, v7"); a("v_add_u32 v7, s34, v7")
    a("v_and_b32 v8, 31, v1"); a("s_lshl_b32 s23, s27, 5"); a("v_add_u32 v8, s23, v8")
    a("v_mul_u32_u24 v8, 896, v8"); a("v_add_u32 v8, v8, v7")
    a("buffer_load_dwordx2 v[112:113], v8, s[16:19], 0 offen")
    a("buffer_load_dwordx2 v[114:115], v8, s[16:19], 0 offen offset:16")
    a("buffer_load_dwordx2 v[116:117], v7, s[60:63], 0 offen")
    a("buffer_load_dwordx2 v[118:119], v7, s[60:63], 0 offen offset:16")
    a("s_waitcnt vmcnt(20)")
    a("s_barrier")
    stamp(a, 9)
    reads(0, 0, 0)
    for c in range(9):
        for ks in range(3):
            z = ks & 1
            reads(z ^ 1, c, ks+1)
            a("s_waitcnt lgkmcnt(4)")
            compute(z, c, ks)
        if c < 8:
            if c == 0: a("s_waitcnt vmcnt(12) lgkmcnt(0)")
            elif c + 2 <= 8 and not (c in (4, 5)): a("s_waitcnt vmcnt(8) lgkmcnt(0)")
            elif c == 4: a("s_waitcnt vmcnt(8) lgkmcnt(0)")
            elif c == 5: a("s_waitcnt vmcnt(8) lgkmcnt(0)")
            else: a("s_waitcnt vmcnt(0) lgkmcnt(0)")
            a("s_barrier")
            reads(0, c+1, 0)
        else:
            a("s_waitcnt lgkmcnt(0)")
        compute(1, c, 3)
        if c + 3 <= 8:
            if c + 3 == 7:
                stamp(a, 10)
                pollgrp(G_FO)
                stamp(a, 11)
            issue(c+3)
    stamp(a, 12)
    a("s_barrier")
    a("s_lshl_b32 s23, s26, 15"); a("s_lshl_b32 s24, s22, 11"); a("s_add_u32 s23, s23, s24")
    a("v_add_u32 v14, s23, v6")
    for q in range(4):
        acc = ACC[q >> 1] + 8*(q & 1)
        k1, k2 = L("SKW"), L("SKX")
        a(f"s_cmp_eq_u32 s22, {q}")
        a(f"s_cbranch_scc1 {k1}")
        a(f"ds_write_b128 v14, {vr(acc,4)} offset:{q*8192}")
        a(f"ds_write_b128 v14, {vr(acc+4,4)} offset:{q*8192+1024}")
        a(f"s_branch {k2}")
        a.label(k1)
        for r in range(8): a(f"v_mov_b32 v{64+r}, v{acc+r}")
        a.label(k2)
    a("s_waitcnt lgkmcnt(0)")
    a("s_barrier")
    a("s_lshl_b32 s23, s26, 15"); a("s_lshl_b32 s24, s22, 13"); a("s_add_u32 s23, s23, s24")
    a("v_add_u32 v14, s23, v6")
    for i in range(1, 4):
        a(f"s_add_u32 s23, s22, {i}"); a("s_and_b32 s23, s23, 3"); a("s_lshl_b32 s23, s23, 11")
        a("v_add_u32 v15, s23, v14")
        a(f"ds_read_b128 {vr(72+8*(i-1),4)}, v15")
        a(f"ds_read_b128 {vr(76+8*(i-1),4)}, v15 offset:1024")
    a("s_waitcnt vmcnt(0) lgkmcnt(0)")
    for r in range(8):
        a(f"v_add_f32 v{64+r}, v{64+r}, v{72+r}")
        a(f"v_add_f32 v{80+r}, v{80+r}, v{88+r}")
    for r in range(8): a(f"v_add_f32 v{64+r}, v{64+r}, v{80+r}")
    for g in range(2):
        for w in range(2):
            for (src) in (112 + 2*g + w, 116 + 2*g + w):
                a(f"v_lshlrev_b32 v15, 16, v{src}")
                a(f"v_add_f32 v{64+4*g+2*w}, v{64+4*g+2*w}, v15")
                a(f"v_and_b32 v15, 0xffff0000, v{src}")
                a(f"v_add_f32 v{64+4*g+2*w+1}, v{64+4*g+2*w+1}, v15")
    for r in range(4): a(f"v_cvt_pk_bf16_f32 v{20+r}, v{64+2*r}, v{64+2*r+1}")
    a("buffer_store_dwordx2 v[20:21], v8, s[64:67], 0 offen")
    a("buffer_store_dwordx2 v[22:23], v8, s[64:67], 0 offen offset:16")
    ne = L("NEP")
    a("s_or_b32 s23, s2, s3")
    a("s_cmp_eq_u32 s23, 0")
    a(f"s_cbranch_scc0 {ne}")
    a(f"s_mov_b32 s23, {EPOCH_OFF}")
    set_flag(a, 23, 40)
    a.label(ne)
    a("s_waitcnt vmcnt(0)")
    stamp(a, 13)

def kernel_desc(name, vgpr, sgpr=100):
    return f""".amdhsa_kernel {name}
  .amdhsa_next_free_vgpr {vgpr}
  .amdhsa_next_free_sgpr {sgpr}
  .amdhsa_accum_offset {(vgpr+3)//4*4}
  .amdhsa_group_segment_fixed_size 0
  .amdhsa_kernarg_size 88
  .amdhsa_user_sgpr_count 2
  .amdhsa_user_sgpr_kernarg_segment_ptr 1
  .amdhsa_system_sgpr_workgroup_id_x 1
  .amdhsa_float_denorm_mode_32 3
.end_amdhsa_kernel
"""
HEADER = open("cdna_kernels/%s.s.ref" % NAME).read().split("; Override launch")[0]

def main(out):
    txt = HEADER
    txt += f"; @launch grid=(256,1,1) block=(512,1,1) lds={LDS_BYTES}\n"
    txt += '.amdgcn_target "amdgcn-amd-amdhsa--gfx950"\n.text\n'
    a = Asm()
    gen(a)
    a.fix_hazards(verbose=bool(os.environ.get("VERB")))
    print("instructions:", sum(1 for x in a.ins if x.kind not in ("label","directive")), "nop fixes:", a.nops_added)
    txt += f".globl {KNAME}\n.p2align 8\n.type {KNAME},@function\n" + a.text()
    txt += '.section .rodata,"a"\n.p2align 6\n' + kernel_desc(KNAME, 256 if STAMP else NVGPR)
    open(out, "w").write(txt)

if __name__ == "__main__":
    main(sys.argv[1] if len(sys.argv) > 1 else "f.s")
```

```python
import sys, math, os, struct
from asmlib import Asm, vr, sr

NAME = "parallel_sum__mha_block__dense_activation_gelu__prompt"
KNAME = NAME + "_kernel"
X_BYTES = 2048*896; WQKV_BYTES = 448*2688; WO_BYTES = 448*896; W1_BYTES = 448*3584
B1_BYTES = 3584; W2_BYTES = 1792*896; B2_BYTES = 896; OUT_BYTES = 2048*896
QF_OFF = 0; KV_OFF = 2<<20; HF_OFF = 6<<20; OF_OFF = 13<<20
STAMP_OFF = 15<<20
REC_OFF = 16<<20; CSP_OFF = REC_OFF + 65536; FLG_OFF = (16<<20) + (512<<10); EPOCH_OFF = FLG_OFF + 32768
WS_BYTES = 17<<20
G_F0R, G_F0C, G_FQ, G_FH, G_FO = 0, 16, 32, 48, 64
LOG2E = 1.4426950408889634
CQ = LOG2E / math.sqrt(28.0)
GC0 = -2.0*math.sqrt(2.0/math.pi)*LOG2E
GC1 = GC0*0.044715
def f2u(f): return struct.unpack("<I", struct.pack("<f", f))[0]
def hexf(f): return "0x%08x" % f2u(f)
STAMP = int(os.environ.get("STAMP", "0"))
ABL = os.environ.get("ABL", "")
NVGPR = 248
SV = 248
LDS_BYTES = 163840

class VM:
    def __init__(self, a): self.a = a; self.n = 0; self.tags = {}
    def op(self, text, tag=None):
        self.a(text); self.n += 1
        if tag is not None: self.tags[tag] = self.n
    def mark(self, tag): self.tags[tag] = self.n
    def wait(self, tag, extra=""):
        k = self.n - self.tags[tag]
        assert k <= 63, (tag, k)
        self.a(f"s_waitcnt vmcnt({k}) {extra}".strip())
    def count(self): self.n += 1

class DualVM:
    def __init__(self, a): self.a = a; self.lo = VM(a); self.hi = VM(a)
    def op(self, text, tag=None):
        self.a(text)
        for v in (self.lo, self.hi):
            v.n += 1
            if tag is not None: v.tags[tag] = v.n
    def count(self):
        self.lo.n += 1; self.hi.n += 1
    def mark(self, tag):
        self.lo.mark(tag); self.hi.mark(tag)
    def split(self, lo_fns, hi_fns):
        a = self.a
        if not lo_fns and not hi_fns: return
        l1, l2 = L("SPL"), L("SPL")
        a("s_cmp_eq_u32 s26, 0"); a(f"s_cbranch_scc0 {l1}")
        for f in lo_fns: f(self.lo)
        if hi_fns: a(f"s_branch {l2}")
        a.label(l1)
        for f in hi_fns: f(self.hi)
        if hi_fns: a.label(l2)
    def wait(self, tag, extra=""):
        kl = self.lo.n - self.lo.tags[tag]; kh = self.hi.n - self.hi.tags[tag]
        if kl == kh: self.lo.wait(tag, extra)
        else: self.split([lambda v: v.wait(tag, extra)], [lambda v: v.wait(tag, extra)])

def stamp(a, slot, vm=None, tmp=88):
    if not STAMP: return
    a(f"s_memrealtime s[{tmp}:{tmp+1}]")
    a(f"s_memtime s[{tmp+2}:{tmp+3}]")
    a(f"s_lshl_b32 s{tmp+7}, s2, 3")
    a(f"s_add_u32 s{tmp+6}, s3, s{tmp+7}")
    a(f"s_lshl_b32 s{tmp+6}, s{tmp+6}, 9")
    a(f"s_add_u32 s{tmp+6}, s{tmp+6}, {STAMP_OFF + slot*16}")
    a("s_waitcnt lgkmcnt(0)")
    for k in range(4): a(f"v_mov_b32 v{SV+k}, s{tmp+k}")
    a(f"v_mov_b32 v{SV+4}, 0")
    a(f"s_mov_b64 s[{tmp}:{tmp+1}], exec")
    a("s_mov_b64 exec, 1")
    a(f"buffer_store_dwordx4 v[{SV}:{SV+3}], v{SV+4}, s[12:15], s{tmp+6} offen")
    a(f"s_mov_b64 exec, s[{tmp}:{tmp+1}]")
    a("s_nop 1")
    if vm is not None: vm.count()

def tick(a, idx):
    if STAMP and "tick" in ABL: a(f"s_memtime s[{88+2*idx}:{89+2*idx}]")
def tick_flush(a, n, slot0, vm=None):
    if not (STAMP and "tick" in ABL): return
    a("s_waitcnt lgkmcnt(0)")
    a("s_lshl_b32 s58, s2, 3"); a("s_add_u32 s57, s3, s58"); a("s_lshl_b32 s57, s57, 9")
    for k in range(n):
        a(f"v_mov_b32 v{SV}, s{88+2*k}"); a(f"v_mov_b32 v{SV+1}, 0"); a(f"v_mov_b32 v{SV+2}, s{88+2*k}"); a(f"v_mov_b32 v{SV+3}, s{89+2*k}")
        a(f"v_mov_b32 v{SV+4}, 0")
        a(f"s_add_u32 s58, s57, {STAMP_OFF + (slot0+k)*16}")
        a("s_mov_b64 exec, 1")
        a(f"buffer_store_dwordx4 v[{SV}:{SV+3}], v{SV+4}, s[12:15], s58 offen")
        a("s_mov_b64 exec, -1")
        a("s_nop 1")
        if vm is not None: vm.count()

def srd(a, s, ptr, nbytes):
    a(f"s_mov_b32 s{s}, s{ptr}")
    a(f"s_and_b32 s{s+1}, s{ptr+1}, 0xffff")
    a(f"s_mov_b32 s{s+2}, {nbytes}")
    a(f"s_mov_b32 s{s+3}, 0x20000")

TAG = 56
uid = [0]
def L(p):
    uid[0] += 1
    return f"{p}_{uid[0]}"

def check_or_poll(a, voff, tv, have_value):
    lp = L("POLL"); ld = L("POLLD"); lc = L("POLLC")
    a("s_mov_b32 s57, 0")
    if have_value: a(f"s_branch {lc}")
    a.label(lp)
    a(f"buffer_load_dword v{tv}, v{voff}, s[12:15], 0 offen sc0 sc1")
    a("s_waitcnt vmcnt(0)")
    a.label(lc)
    a(f"v_cmp_ne_u32 vcc, s{TAG}, v{tv}")
    a("s_nop 1")
    a("s_cmp_eq_u64 vcc, 0")
    a(f"s_cbranch_scc1 {ld}")
    a("s_add_u32 s57, s57, 1")
    a("s_cmp_gt_u32 s57, 0x40000")
    a(f"s_cbranch_scc1 {ld}")
    a("s_sleep 1")
    a(f"s_branch {lp}")
    a.label(ld)

def set_flag(a, soff_sgpr, tv):
    a(f"v_mov_b32 v{tv}, s{TAG}")
    a(f"v_mov_b32 v{tv+1}, 0")
    a("s_mov_b64 s[58:59], exec")
    a("s_mov_b64 exec, 1")
    a(f"buffer_store_dword v{tv}, v{tv+1}, s[12:15], s{soff_sgpr} offen sc0 sc1")
    a("s_mov_b64 exec, s[58:59]")

ASLOT = [32768, 65536, 98304, 131072]
RF0 = 0
CNT0 = 28672
TRS = ASLOT[3]
WAUGL = ASLOT[3] + 8192
CNT = ASLOT[3] + 24576
SQL = ASLOT[3] + 24832
CSL = ASLOT[3] + 26624
QLOC0 = ASLOT[3] + 16384
FLOC = [RF0, ASLOT[0], ASLOT[1], ASLOT[2]]

def wg_signal(a, cnt_idx, nwaves, flag_soff_sgprs, tv, base=None):
    done = L("SIG")
    a(f"v_mov_b32 v{tv}, {(CNT if base is None else base) + 4*cnt_idx}")
    a(f"v_mov_b32 v{tv+1}, 1")
    a("s_mov_b64 s[58:59], exec")
    a("s_mov_b64 exec, 1")
    a(f"ds_add_rtn_u32 v{tv+2}, v{tv}, v{tv+1}")
    a("s_waitcnt lgkmcnt(0)")
    a(f"v_readfirstlane_b32 s57, v{tv+2}")
    a("s_mov_b64 exec, s[58:59]")
    a(f"s_cmp_eq_u32 s57, {nwaves-1}")
    a(f"s_cbranch_scc0 {done}")
    for s in flag_soff_sgprs: set_flag(a, s, tv)
    a.label(done)

def flag_off(a, dst, group_base, grp_sgpr, idx_sgpr):
    a(f"s_lshl_b32 s{dst}, s{grp_sgpr}, 8")
    a(f"s_lshl_b32 s57, s{idx_sgpr}, 2")
    a(f"s_add_u32 s{dst}, s{dst}, s57")
    a(f"s_add_u32 s{dst}, s{dst}, {FLG_OFF + group_base*256}")

def tr_lane_addr(a, dst, tmp, half_shift):
    a(f"v_lshrrev_b32 v{dst}, 5, v1"); a(f"v_lshlrev_b32 v{dst}, {half_shift}, v{dst}")
    a(f"v_bfe_u32 v{tmp}, v1, 2, 2"); a(f"v_lshl_add_u32 v{dst}, v{tmp}, 6, v{dst}")
    a(f"v_bfe_u32 v{tmp}, v1, 4, 1"); a(f"v_lshl_add_u32 v{dst}, v{tmp}, 5, v{dst}")
    a(f"v_and_b32 v{tmp}, 3, v1"); a(f"v_lshl_add_u32 v{dst}, v{tmp}, 3, v{dst}")

def gen(a):
    a.label(KNAME)
    a("s_cmp_ge_u32 s2, 256")
    a("s_cbranch_scc1 K_END")
    a("s_load_dwordx4 s[36:39], s[0:1], 0")
    a("s_load_dwordx2 s[40:41], s[0:1], 16")
    a("s_load_dwordx8 s[44:51], s[0:1], 32")
    a("s_load_dwordx2 s[52:53], s[0:1], 64")
    a("s_load_dwordx2 s[54:55], s[0:1], 80")
    a("s_and_b32 s23, s2, 7")
    a("s_lshr_b32 s24, s2, 3")
    a("s_and_b32 s20, s23, 1"); a("s_lshl_b32 s20, s20, 3"); a("s_and_b32 s25, s24, 7"); a("s_add_u32 s20, s20, s25")
    a("s_lshr_b32 s21, s23, 1"); a("s_lshl_b32 s21, s21, 2"); a("s_lshr_b32 s25, s24, 3"); a("s_add_u32 s21, s21, s25")
    a("v_lshrrev_b32 v2, 6, v0")
    a("v_and_b32 v1, 63, v0")
    a("v_readfirstlane_b32 s3, v2")
    a("v_lshlrev_b32 v6, 4, v1")
    a("s_and_b32 s22, s3, 3")
    a("s_lshr_b32 s26, s3, 2")
    phase_ab_common(a)
    a("s_cmp_ge_u32 s3, 4")
    a("s_cbranch_scc1 AB_B")
    phase_ab(a, False)
    a("s_branch PH_C")
    a.label("AB_B")
    phase_ab(a, True)
    a.label("PH_C")
    phase_cd(a)
    a.label("K_END")
    a("s_endpgm")

XA = 8
XB = 12
WA = 16
WB = 240
FA = 20
NDMA = 4
XR = 128

def ab_dma(a, vm, st):
    slot = ASLOT[st % 4]
    ops = []
    for q in range(4):
        def f(q=q):
            a(f"s_add_u32 m0, s27, {slot + q*1024}")
            a(f"s_add_u32 s57, s24, {q*8*896 + st*128}")
            vm.op(f"buffer_load_dwordx4 v{3 + (q & 1)}, s[4:7], s57 offen lds")
        ops.append(f)
    for q in range(4):
        def f(q=q):
            a(f"s_add_u32 m0, s34, {slot + 16384 + q*1024}")
            a(f"s_add_u32 s57, s64, {(st*64 + q*16)*2688}")
            vm.op("buffer_load_dwordx4 v5, s[8:11], s57 offen lds")
        ops.append(f)
    def last(): vm.mark(("st", st))
    ops.append(last)
    return ops

def ab_dma8(a, vm, st):
    slot = ASLOT[st % 4]
    ops = []
    for q in range(2):
        def f(q=q):
            a(f"s_add_u32 m0, s96, {slot + q*1024}")
            a(f"s_add_u32 s57, s97, {q*8*896 + st*128}")
            vm.op(f"buffer_load_dwordx4 v{3 + q}, s[4:7], s57 offen lds")
        ops.append(f)
    for q in range(2):
        def f(q=q):
            a(f"s_add_u32 m0, s98, {slot + 16384 + q*1024}")
            a(f"s_add_u32 s57, s99, {(st*64 + q*16)*2688}")
            vm.op("buffer_load_dwordx4 v5, s[8:11], s57 offen lds", ("st", st) if q == 1 else None)
        ops.append(f)
    return ops

def f_dma(a, vm, t):
    ops = []
    for q in range(7):
        def f(q=q):
            a(f"s_add_u32 m0, s35, {FLOC[t] + q*1024}")
            a(f"s_add_u32 s67, s66, s{60+t}") if q == 0 else a(f"s_add_u32 s67, s67, {16*3584}")
            vm.op("buffer_load_dwordx4 v7, s[16:19], s67 offen lds", ("F", t))
        ops.append(f)
    return ops

def lds_inc(a, idx, tv):
    a(f"v_mov_b32 v{tv}, {CNT + 4*idx}"); a(f"v_mov_b32 v{tv+1}, 1")
    a("s_mov_b64 s[58:59], exec"); a("s_mov_b64 exec, 1")
    a(f"ds_add_u32 v{tv}, v{tv+1}")
    a("s_mov_b64 exec, s[58:59]")

def lds_wait(a, idx, n, tv):
    lw = L("LW")
    a(f"v_mov_b32 v{tv}, {CNT + 4*idx}")
    a.label(lw)
    a(f"ds_read_b32 v{tv+1}, v{tv}")
    a("s_waitcnt lgkmcnt(0)")
    a(f"v_readfirstlane_b32 s57, v{tv+1}")
    a(f"s_cmp_ge_u32 s57, {n}")
    a(f"s_cbranch_scc0 {lw}")

def phase_ab_common(a):
    a("v_lshrrev_b32 v5, 3, v1"); a("v_mul_u32_u24 v5, 896, v5")
    a("v_and_b32 v9, 7, v1"); a("v_lshrrev_b32 v10, 4, v1"); a("v_xor_b32 v9, v9, v10")
    a("v_lshl_add_u32 v3, v9, 4, v5"); a("v_xor_b32 v9, 4, v9"); a("v_lshl_add_u32 v4, v9, 4, v5")
    a("v_lshrrev_b32 v9, 2, v1"); a("v_and_b32 v10, 3, v1"); a("v_lshlrev_b32 v10, 4, v10")
    a("v_mul_u32_u24 v5, 2688, v9"); a("v_add_u32 v5, v5, v10")
    a("v_mul_u32_u24 v7, 3584, v9"); a("v_add_u32 v7, v7, v10")
    a("v_mov_b32 v24, 0x7fffff00"); a("v_cmp_gt_u32 vcc, 56, v1"); a("v_cndmask_b32 v24, v24, v6, vcc")
    a("s_mul_i32 s28, s21, 168")
    a("s_lshr_b32 s32, s21, 1"); a("s_mul_i32 s32, s32, 7")
    a("s_and_b32 s33, s21, 1"); a("s_lshl_b32 s33, s33, 2"); a("s_add_u32 s33, s33, s32")
    a("s_lshl_b32 s60, s33, 6"); a("s_add_u32 s61, s60, 64"); a("s_add_u32 s62, s60, 128")
    a("s_add_u32 s63, s32, 3"); a("s_lshl_b32 s63, s63, 6")
    a("s_lshl_b32 s24, s20, 7"); a("s_lshl_b32 s25, s22, 5"); a("s_add_u32 s24, s24, s25"); a("s_mul_i32 s24, s24, 896")
    a("s_lshl_b32 s27, s22, 12")
    a("s_and_b32 s64, s28, 0xffffffc0")
    a("s_lshl_b32 s57, s22, 6"); a("s_add_u32 s64, s64, s57")
    a("s_lshl_b32 s34, s22, 12")
    a("s_lshl_b32 s96, s3, 11")
    a("s_lshl_b32 s97, s20, 7"); a("s_lshl_b32 s57, s3, 4"); a("s_add_u32 s97, s97, s57"); a("s_mul_i32 s97, s97, 896")
    a("s_lshl_b32 s98, s22, 12"); a("s_lshl_b32 s57, s26, 11"); a("s_add_u32 s98, s98, s57")
    a(f"s_mul_i32 s57, s26, {32*2688}"); a("s_add_u32 s99, s64, s57")
    a(f"s_mul_i32 s66, s22, {7*16*3584}")
    a("s_mul_i32 s35, s22, 7168")
    a("s_mov_b32 s68, s60")
    for t in (1, 2, 3):
        a(f"s_cmp_eq_u32 s22, {t}"); a(f"s_cselect_b32 s68, s{60+t}, s68")
    a("v_lshrrev_b32 v9, 4, v1"); a("v_and_b32 v10, 15, v1"); a("v_lshlrev_b32 v10, 2, v10")
    a(f"v_mul_u32_u24 v25, {7*2688}, v9"); a("v_add_u32 v25, v25, v10")
    a(f"v_mul_u32_u24 v26, {7*3584}, v9"); a("v_add_u32 v26, v26, v10")
    a("s_waitcnt lgkmcnt(0)")
    srd(a, 4, 36, X_BYTES)
    srd(a, 8, 38, WQKV_BYTES)
    srd(a, 16, 44, W1_BYTES)
    srd(a, 12, 54, WS_BYTES)
    srd(a, 76, 46, B1_BYTES)
    a(f"s_add_u32 s58, s54, {EPOCH_OFF}"); a("s_addc_u32 s59, s55, 0")
    a(f"s_load_dword s{TAG}, s[58:59], 0")

def phase_ab(a, isB):
    vm = VM(a)
    stamp(a, 0, vm)
    if not isB:
        for st in range(4):
            for f in ab_dma(a, vm, st): f()
    else:
        a(f"s_mul_i32 s57, s20, {28*3584}"); a("s_add_u32 s70, s68, s57")
        for r in range(7):
            a(f"s_add_u32 s57, s70, {r*3584}")
            vm.op(f"buffer_load_dword v{64+r}, v26, s[16:19], s57 offen")
        vm.mark("p0")
    a("v_and_b32 v9, 31, v1"); a("s_lshl_b32 s57, s22, 5"); a("v_add_u32 v9, s57, v9")
    a("v_bfe_u32 v10, v9, 1, 3"); a("v_lshrrev_b32 v11, 5, v1"); a("v_xor_b32 v10, v10, v11")
    a("v_lshlrev_b32 v27, 7, v9")
    a("v_mov_b32 v24, v10")
    for ks in range(4):
        a(f"v_xor_b32 v25, {2*ks}, v24")
        a(f"v_lshl_add_u32 v{XA+ks}, v25, 4, v27")
        a(f"v_add_u32 v{XA+ks}, 0x8000, v{XA+ks}")
        a(f"v_add_u32 v{XB+ks}, 0x10000, v{XA+ks}")
    tr_lane_addr(a, FA, 25, 9)
    a(f"v_add_u32 v{FA+1}, 0x10000, v{FA}"); a(f"v_add_u32 v{FA+2}, 0x10000, v{FA+1}")
    a("s_and_b32 s57, s28, 63")
    a("v_bfe_u32 v24, v1, 4, 1"); a("v_lshlrev_b32 v24, 5, v24")
    a("v_and_b32 v25, 3, v1"); a("v_lshl_add_u32 v24, v25, 3, v24")
    a("v_add_u32 v24, s57, v24")
    a("v_lshrrev_b32 v25, 5, v1"); a("v_lshlrev_b32 v25, 9, v25")
    a("v_bfe_u32 v26, v1, 2, 2"); a("v_lshl_add_u32 v25, v26, 6, v25")
    if isB:
        a("s_min_u32 s57, s22, 2"); a("s_mul_i32 s57, s57, 56"); a("v_add_u32 v24, s57, v24")
    for t in range(1 if isB else 3):
        a(f"v_add_u32 v26, {56*t}, v24")
        a("v_lshrrev_b32 v27, 6, v26"); a("v_lshlrev_b32 v27, 12, v27")
        a("v_and_b32 v26, 63, v26")
        a(f"v_add3_u32 v{WA+t}, v27, v26, v25")
        a(f"v_add_u32 v{WA+t}, {32768+16384}, v{WA+t}")
        a(f"v_add_u32 v{WB+t}, 0x10000, v{WA+t}")
    if not isB:
        WF = [[40, 44, 48], [52, 56, 60], [64, 68, 72]]
        ACC = [80, 96, 112]
        for t in range(3):
            for r in range(16): a(f"v_mov_b32 v{ACC[t]+r}, 0")
    if isB:
        vm.wait("p0", "lgkmcnt(0)")
        a("v_mov_b32 v56, 0"); a("v_mov_b32 v57, 0")
        for r in range(7):
            a(f"v_lshlrev_b32 v26, 16, v{64+r}"); a(f"v_and_b32 v27, 0xffff0000, v{64+r}")
            a("v_add_f32 v56, v56, v26"); a("v_add_f32 v57, v57, v27")
        for reg in (56, 57):
            a(f"v_mov_b32 v58, v{reg}"); a(f"v_mov_b32 v59, v{reg}")
            a("v_permlane32_swap_b32 v58, v59"); a(f"v_add_f32 v{reg}, v58, v59")
            a(f"v_mov_b32 v58, v{reg}"); a(f"v_mov_b32 v59, v{reg}")
            a("v_permlane16_swap_b32 v58, v59"); a(f"v_add_f32 v{reg}, v58, v59")
        a("s_lshl_b32 s57, s21, 4"); a("s_add_u32 s57, s57, s20"); a("s_lshl_b32 s57, s57, 9")
        a("s_lshl_b32 s70, s22, 7"); a("s_add_u32 s57, s57, s70"); a(f"s_add_u32 s57, s57, {CSP_OFF}")
        a("v_and_b32 v26, 15, v1"); a("v_lshlrev_b32 v26, 3, v26")
        a("s_mov_b64 s[58:59], exec"); a("s_mov_b64 exec, 0xffff")
        vm.op("buffer_store_dwordx2 v[56:57], v26, s[12:15], s57 offen sc1", "p0st")
        a("s_mov_b64 exec, s[58:59]")
    else:
        a("s_waitcnt lgkmcnt(0)")
    a(f"s_add_u32 s{TAG}, s{TAG}, 1")
    a("s_lshl_b32 s75, s21, 8"); a("s_lshl_b32 s57, s20, 4"); a("s_add_u32 s75, s75, s57"); a("s_lshl_b32 s57, s22, 2"); a("s_add_u32 s75, s75, s57")
    a(f"s_add_u32 s75, s75, {FLG_OFF + G_F0C*256}")
    a("v_lshlrev_b32 v24, 2, v1")
    a("s_lshl_b32 s57, s21, 8"); a(f"s_add_u32 s57, s57, {FLG_OFF + G_F0C*256}"); a("v_add_u32 v24, s57, v24")
    a("s_lshl_b32 s71, s20, 2"); a("s_add_u32 s71, s71, s22")
    stamp(a, 1, vm)
    REC = 28
    EP = 96
    FLG = 246
    ONES = 36
    CSA = 80
    BW = [40, 44, 48]
    SQ = 52
    def xaddr(g):
        c, ks = g >> 2, g & 3
        s_ = c % 4
        return (f"v{XA+ks} offset:{s_*32768}" if s_ < 2 else f"v{XB+ks} offset:{(s_-2)*32768}")
    def reads(g):
        c, ks = g >> 2, g & 3
        s_ = c % 4
        z = g % 3
        a(f"ds_read_b128 {vr(XR+4*g,4)}, {xaddr(g)}")
        for t in range(1 if isB else 3):
            reg, off = (WA+t, s_*32768) if s_ < 2 else (WB+t, (s_-2)*32768)
            dst = BW[z] if isB else WF[z][t]
            a(f"ds_read_b64_tr_b16 {vr(dst,2)}, v{reg} offset:{off+ks*1024}")
            a(f"ds_read_b64_tr_b16 {vr(dst+2,2)}, v{reg} offset:{off+ks*1024+256}")
    def compute(g, extra=()):
        extra = list(extra)
        z = g % 3
        if isB:
            cc = "0" if g == 0 else vr(CSA,16)
            a(f"v_mfma_f32_32x32x16_bf16 {vr(CSA,16)}, {vr(BW[z],4)}, {vr(ONES,4)}, {cc}")
            for d in range(4):
                x = XR + 4*g + d
                a(f"v_lshlrev_b32 v{56+2*d}, 16, v{x}"); a(f"v_and_b32 v{57+2*d}, 0xffff0000, v{x}")
            for f in extra: f()
            extra = []
            for d in range(8):
                a(f"v_fmac_f32 v{SQ+(d&3)}, v{56+d}, v{56+d}")
            for f in extra: f()
            return
        for r in range(4): a(f"v_cndmask_b32 v{WF[z][0]+r}, v{WF[z][0]+r}, v{ONES}, s[72:73]")
        for t in (1, 2, 0):
            a(f"v_mfma_f32_32x32x16_bf16 {vr(ACC[t],16)}, {vr(WF[z][t],4)}, {vr(XR+4*g,4)}, {vr(ACC[t],16)}")
            for f in extra: f()
            extra = []
    def epi_loads():
        a("v_and_b32 v25, 31, v1"); a("v_lshlrev_b32 v26, 2, v25")
        a("v_lshrrev_b32 v27, 5, v1"); a(f"v_mul_u32_u24 v27, {8*512}, v27"); a("v_add_u32 v26, v26, v27")
        a("s_lshl_b32 s70, s21, 13"); a(f"s_add_u32 s70, s70, {CSP_OFF}")
        a("s_lshl_b32 s57, s22, 7"); a("s_add_u32 s70, s70, s57")
        for q in range(8):
            a(f"s_add_u32 s57, s70, {q*512}")
            vm.op(f"buffer_load_dword v{EP+q}, v26, s[12:15], s57 offen sc1")
        a("v_lshlrev_b32 v25, 1, v25")
        vm.op(f"buffer_load_ushort v{EP+8}, v25, s[76:79], s68 offen")
        vm.mark("epi")
    def waug_build():
        a("v_cmp_gt_u32 vcc, 32, v1")
        C = EP
        a(f"v_add_f32 v{C}, v{C}, v{C+1}"); a(f"v_add_f32 v{C+2}, v{C+2}, v{C+3}")
        a(f"v_add_f32 v{C+4}, v{C+4}, v{C+5}"); a(f"v_add_f32 v{C+6}, v{C+6}, v{C+7}")
        a(f"v_add_f32 v{C}, v{C}, v{C+2}"); a(f"v_add_f32 v{C+4}, v{C+4}, v{C+6}")
        a(f"v_add_f32 v{C}, v{C}, v{C+4}")
        a(f"v_mov_b32 v{C+1}, v{C}"); a(f"v_mov_b32 v{C+2}, v{C}")
        a(f"v_permlane32_swap_b32 v{C+1}, v{C+2}")
        a(f"v_add_f32 v{C}, v{C+1}, v{C+2}")
        a(f"v_cvt_pk_bf16_f32 v{C+1}, v{C}, v{C}"); a(f"v_and_b32 v{C+1}, 0xffff0000, v{C+1}"); a(f"v_sub_f32 v{C+2}, v{C}, v{C+1}")
        wa = C + 4
        a(f"v_cvt_pk_bf16_f32 v{wa}, v{C+1}, v{C+2}"); a(f"v_cndmask_b32 v{wa}, 0, v{wa}, vcc"); a(f"v_mov_b32 v{wa+1}, v{wa}")
        a(f"v_lshl_or_b32 v{wa+2}, v{EP+8}, 16, v{EP+8}"); a(f"v_cndmask_b32 v{wa+2}, 0, v{wa+2}, vcc")
        a(f"v_mov_b32 v{wa+3}, 0")
        a("s_lshl_b32 s57, s22, 10"); a(f"s_add_u32 s57, s57, {WAUGL + 3*1024}"); a("v_add_u32 v25, s57, v6")
        a(f"ds_write_b128 v25, {vr(wa,4)}")
    if isB:
        for r in range(4): a(f"v_mov_b32 v{ONES+r}, 0x3f803f80")
        for r in range(4): a(f"v_mov_b32 v{SQ+r}, 0")
        for f in f_dma(a, vm, 0): f()
        vm.wait("p0st")
        set_flag(a, 75, 244)
    else:
        a(f"v_mov_b32 v{ONES}, 0x3f803f80")
        a("v_and_b32 v25, 31, v1"); a("v_cmp_eq_u32 s[72:73], 28, v25")
        vm.wait(("st", 0))
    a("s_barrier")
    stamp(a, 2, vm)
    NRD = 3 if isB else 7
    if isB and 'noprio' not in ABL: a('s_setprio 2')
    reads(0); reads(1)
    issued = 2
    pendq = []
    for g in range(28):
        c, ks = g >> 2, g & 3
        extra = []
        if ks == 3 and c < 6:
            if "tickA" in ABL and c in (1, 2, 3): tick(a, 2*(c-1))
            if ("st", c+1) in vm.tags: vm.wait(("st", c+1), "lgkmcnt(0)")
            else: a("s_waitcnt lgkmcnt(0)")
            a("s_barrier")
            if c in (1, 2, 3): tick(a, 2*(c-1)+1)
            reads(g+1); reads(g+2); issued = g + 3
            if c + 4 <= 6: pendq += ab_dma8(a, vm, c+4)
            if c == 3:
                def zc():
                    a(f"v_mov_b32 v244, {CNT}"); a("v_lshl_add_u32 v244, v1, 2, v244"); a("v_mov_b32 v245, 0"); a("ds_write_b32 v244, v245")
                extra.append(zc)
                if isB: pendq += []
            if isB and c == 4: pendq += f_dma(a, vm, 1)
            if isB and c == 5: pendq += f_dma(a, vm, 2)
            if isB and c == 4:
                def fl(): vm.op(f"buffer_load_dword v{FLG}, v24, s[12:15], 0 offen sc0 sc1", "flag0")
                pendq.append(fl)
        else:
            lim = min(4*c + 4, 28)
            if issued <= g + 2 and issued < lim:
                reads(issued); issued += 1
            pend = issued - (g + 1)
            a(f"s_waitcnt lgkmcnt({min(pend*NRD, 15)})")
        npop = 1 if c < 4 else 2
        for _ in range(npop):
            if pendq: extra.append(pendq.pop(0))
        compute(g, extra)
    for f in pendq: f()
    if isB and 'noprio' not in ABL: a('s_setprio 0')
    if isB:
        a(f"v_add_f32 v{SQ}, v{SQ}, v{SQ+1}"); a(f"v_add_f32 v{SQ+2}, v{SQ+2}, v{SQ+3}"); a(f"v_add_f32 v{SQ}, v{SQ}, v{SQ+2}")
        a(f"v_mov_b32 v54, v{SQ}"); a(f"v_mov_b32 v55, v{SQ}"); a("v_permlane32_swap_b32 v54, v55"); a(f"v_add_f32 v{SQ}, v54, v55")
        a("v_and_b32 v25, 31, v1"); a("s_lshl_b32 s57, s22, 7"); a(f"s_add_u32 s57, s57, {SQL}"); a("v_lshl_add_u32 v25, v25, 2, s57")
        a(f"ds_write_b32 v25, v{SQ}")
        a("v_lshrrev_b32 v25, 5, v1"); a("v_lshlrev_b32 v25, 4, v25")
        a("s_lshl_b32 s57, s22, 7"); a(f"s_add_u32 s57, s57, {CSL}"); a("v_add_u32 v25, s57, v25")
        a("s_mov_b64 s[58:59], exec"); a("s_mov_b32 exec_lo, 1"); a("s_mov_b32 exec_hi, 1")
        for q in range(4): a(f"ds_write_b128 v25, {vr(CSA+4*q,4)} offset:{32*q}")
        a("s_mov_b64 exec, s[58:59]")
    a("s_waitcnt lgkmcnt(0)")
    a("s_barrier")
    tick_flush(a, 6, 20, vm)
    stamp(a, 3, vm)
    a("v_and_b32 v25, 31, v1"); a("s_lshl_b32 s57, s22, 7"); a(f"s_add_u32 s57, s57, {SQL}"); a("v_lshl_add_u32 v25, v25, 2, s57")
    if not isB:
        a(f"v_mov_b32 v54, v{ACC[0]+12}"); a(f"v_mov_b32 v55, v{ACC[0]+12}"); a("v_permlane32_swap_b32 v54, v55")
        a("ds_write_b32 v25, v55 offset:512")
        a("ds_read_b32 v35, v25")
        a("s_waitcnt lgkmcnt(0)")
        lds_inc(a, 8 + 0, 56)
        a("v_mov_b32 v34, v55")
    else:
        lds_wait(a, 8, 4, 56)
        a("ds_read_b32 v34, v25 offset:512"); a("ds_read_b32 v35, v25")
        a("s_waitcnt lgkmcnt(0)")
    a(f"v_mul_f32 v34, {hexf(1.0/448)}, v34")
    a(f"v_mul_f32 v35, {hexf(1.0/448)}, v35")
    a("v_fma_f32 v35, -v34, v34, v35"); a("v_max_f32 v35, 0, v35"); a(f"v_add_f32 v35, {hexf(1e-5)}, v35")
    a(f"v_rsq_f32 v{REC+4}, v35"); a(f"v_mul_f32 v{REC+5}, v35, v{REC+4}")
    a("v_cvt_pk_bf16_f32 v54, v34, v34"); a("v_and_b32 v54, 0xffff0000, v54"); a("v_sub_f32 v55, v34, v54")
    a(f"v_cvt_pk_bf16_f32 v{REC}, -v54, -v54"); a(f"v_cvt_pk_bf16_f32 v{REC+1}, -v55, -v55")
    a(f"v_cvt_pk_bf16_f32 v54, v{REC+5}, v{REC+5}"); a("v_and_b32 v54, 0xffff0000, v54"); a(f"v_sub_f32 v55, v{REC+5}, v54")
    a(f"v_cvt_pk_bf16_f32 v{REC+2}, v54, v55")
    a("v_cmp_gt_u32 vcc, 32, v1")
    for r in range(REC, REC+3): a(f"v_cndmask_b32 v{r}, 0, v{r}, vcc")
    a(f"v_mov_b32 v{REC+3}, 0")
    RS, SD, MEAN = REC+4, REC+5, 34
    K0, K1, SDP = 243, 244, 245
    LA = 5
    def f_setup():
        a(f"v_mul_f32 v{K0}, {hexf(GC0)}, v{RS}")
        a(f"v_mul_f32 v{K1}, v{RS}, v{RS}"); a(f"v_mul_f32 v{K1}, v{K1}, v{RS}"); a(f"v_mul_f32 v{K1}, {hexf(GC1)}, v{K1}")
        a(f"v_mov_b32 v{SDP}, v{SD}")
        a("s_mul_i32 s64, s71, 112*1024"); a(f"s_add_u32 s64, s64, {HF_OFF}")
    WF2 = [40, 44, 48, 52, 56, 60]
    XT = 8
    AC2 = [64, 80]
    T = 96; PKS = [112, 120]; WG2 = 36
    def gelu_ops(t, z):
        acc = AC2[z]
        ops = []
        A_ = lambda s_: ops.append(lambda s_=s_: a(s_))
        for h0 in (0, 8):
            R = range(h0, h0+8)
            for r in R: A_(f"v_mul_f32 v{T+r}, v{acc+r}, v{acc+r}")
            for r in R: A_(f"v_fma_f32 v{T+r}, v{T+r}, v{K1}, v{K0}")
            for r in R: A_(f"v_mul_f32 v{T+r}, v{T+r}, v{acc+r}")
            for r in R: A_(f"v_exp_f32 v{T+r}, v{T+r}")
            for r in R: A_(f"v_fma_f32 v{T+r}, v{T+r}, v{SDP}, v{SDP}")
            for r in R: A_(f"v_rcp_f32 v{T+r}, v{T+r}")
            for r in R: A_(f"v_mul_f32 v{T+r}, v{T+r}, v{acc+r}")
        PK = PKS[z]
        for r in range(8): A_(f"v_cvt_pk_bf16_f32 v{PK+r}, v{T+2*r}, v{T+2*r+1}")
        A_(f"s_lshl_b32 s67, s{60+t}, 5"); A_("s_add_u32 s67, s67, s64")
        A_(f"buffer_store_dwordx4 {vr(PK,4)}, v6, s[12:15], s67 offen sc1")
        A_(f"buffer_store_dwordx4 {vr(PK+4,4)}, v6, s[12:15], s67 offen offset:1024 sc1")
        return ops
    def fread(t, g):
        off = FLOC[t] + g*1024
        reg = FA + (off >> 16); off &= 0xffff
        a(f"ds_read_b64_tr_b16 {vr(WF2[g%6],2)}, v{reg} offset:{off}")
        a(f"ds_read_b64_tr_b16 {vr(WF2[g%6]+2,2)}, v{reg} offset:{off+256}")
    def tile(t, z, pend, pre_aug=None):
        acc = AC2[z]
        for g in range(LA): fread(t, g)
        per = (len(pend) + 25) // 26
        for g in range(28):
            if g + LA < 28: fread(t, g+LA)
            after = min(g + LA, 27) - g
            a(f"s_waitcnt lgkmcnt({2*after})")
            cc = "0" if g == 0 else vr(acc,16)
            a(f"v_mfma_f32_32x32x16_bf16 {vr(acc,16)}, {vr(WF2[g%6],4)}, {vr(XR+4*g,4)}, {cc}")
            for _ in range(per):
                if pend: pend.pop(0)()
        if pre_aug: pre_aug()
        a(f"v_add_u32 v25, {WAUGL + (3+t)*1024}, v6")
        a(f"ds_read_b128 {vr(WG2,4)}, v25")
        while pend: pend.pop(0)()
        a("s_waitcnt lgkmcnt(0)")
        a(f"v_mfma_f32_32x32x16_bf16 {vr(acc,16)}, {vr(WG2,4)}, {vr(REC,4)}, {vr(acc,16)}")
    if not isB:
        a("v_lshrrev_b32 v25, 5, v1"); a("v_lshlrev_b32 v25, 4, v25"); a(f"v_add_u32 v27, {CSL}, v25")
        a(f"v_mul_f32 v57, {hexf(CQ)}, v{RS}")
        a("v_cmp_le_u32 s[72:73], 32, v1")
        a("s_lshl_b32 s70, s22, 11"); a(f"s_add_u32 s70, s70, {TRS}")
        a("v_and_b32 v24, 31, v1"); a("v_lshlrev_b32 v24, 6, v24"); a("v_lshrrev_b32 v25, 5, v1"); a("v_lshl_add_u32 v24, v25, 3, v24")
        a("v_add_u32 v24, s70, v24")
        tr_lane_addr(a, 25, 26, 8); a("v_add_u32 v25, s70, v25")
        a("s_mov_b32 s88, s60"); a("s_mov_b32 s89, s61"); a("s_mov_b32 s90, s62") if False else None
        for pos in range(3):
            lv, le = L("EV"), L("EE")
            a("s_mul_i32 s64, s21, 3"); a(f"s_add_u32 s64, s64, {pos}")
            a("s_lshr_b32 s65, s64, 4"); a("s_and_b32 s64, s64, 15")
            a("s_lshl_b32 s66, s64, 6"); a("s_add_u32 s66, s66, s71")
            acc = ACC[pos]
            a("s_cmp_eq_u32 s65, 0"); a("s_cselect_b64 s[80:81], -1, 0")
            a(f"v_cndmask_b32 v56, v{RS}, v57, s[80:81]")
            for q in range(4): a(f"ds_read_b128 {vr(XT+4*q,4)}, v27 offset:{128*pos + 32*q}")
            a(f"v_mul_f32 v35, -v{MEAN}, v56")
            for r in range(16): a(f"v_mul_f32 v{acc+r}, v56, v{acc+r}")
            a("s_waitcnt lgkmcnt(0)")
            for r in range(16): a(f"v_fmac_f32 v{acc+r}, v35, v{XT+r}")
            PK = 40 + 8*(pos & 1) if pos < 2 else 68
            for r in range(8): a(f"v_cvt_pk_bf16_f32 v{PK+r}, v{acc+2*r}, v{acc+2*r+1}")
            a("s_mov_b32 s67, 0"); a("s_mov_b32 s68, 0")
            a("s_cmp_eq_u32 s65, 1"); a("s_cselect_b32 s67, 0x3f803f80, s67"); a("s_cselect_b32 s68, 0x00003f80, s68")
            a("s_cmp_eq_u32 s65, 2"); a("s_cselect_b32 s67, 0x00003f80, s67")
            a("v_mov_b32 v58, s67"); a("v_mov_b32 v59, s68")
            a(f"v_cndmask_b32 v{PK+6}, v{PK+6}, v58, s[72:73]"); a(f"v_cndmask_b32 v{PK+7}, v{PK+7}, v59, s[72:73]")
            a(f"s_cbranch_scc1 {lv}")
            a("s_lshl_b32 s67, s66, 11"); a("s_lshl_b32 s68, s66, 12"); a(f"s_add_u32 s68, s68, {KV_OFF}")
            a("s_cmp_eq_u32 s65, 0"); a("s_cselect_b32 s67, s67, s68")
            a(f"buffer_store_dwordx4 {vr(PK,4)}, v6, s[12:15], s67 offen sc1")
            a(f"buffer_store_dwordx4 {vr(PK+4,4)}, v6, s[12:15], s67 offen offset:1024 sc1")
            a(f"s_branch {le}")
            a.label(lv)
            for g in range(4): a(f"ds_write_b64 v24, {vr(PK+2*g,2)} offset:{16*g}")
            a("s_waitcnt lgkmcnt(0)")
            for f in range(2):
                a(f"ds_read_b64_tr_b16 {vr(60+4*f,2)}, v25 offset:{1024*f}")
                a(f"ds_read_b64_tr_b16 {vr(60+4*f+2,2)}, v25 offset:{1024*f+512}")
            a("s_lshl_b32 s68, s66, 12"); a(f"s_add_u32 s68, s68, {KV_OFF+2048}")
            a("s_waitcnt lgkmcnt(0)")
            a("buffer_store_dwordx4 v[60:63], v6, s[12:15], s68 offen sc1")
            a("buffer_store_dwordx4 v[64:67], v6, s[12:15], s68 offen offset:1024 sc1")
            a("s_nop 1")
            a.label(le)
        stamp(a, 4)
        tr_lane_addr(a, FA, 25, 9)
        a(f"v_add_u32 v{FA+1}, 0x10000, v{FA}"); a(f"v_add_u32 v{FA+2}, 0x10000, v{FA+1}")
        f_setup()
        lds_wait(a, 6, 4, 24)
        tile(2, 0, [], pre_aug=lambda: lds_wait(a, 9, 4, 24))
        a("s_waitcnt vmcnt(0)")
        flag_off(a, 91, G_FQ, 21, 20)
        wg_signal(a, 1, 4, [91], 56)
        stamp(a, 5)
        for f in gelu_ops(2, 0): f()
        stamp(a, 18)
        a("s_add_u32 s80, s21, 16"); a("s_mul_i32 s80, s80, 171"); a("s_lshr_b32 s80, s80, 9")
        a("s_add_u32 s81, s21, 32"); a("s_mul_i32 s81, s81, 171"); a("s_lshr_b32 s81, s81, 9")
        a("s_mul_i32 s82, s21, 171"); a("s_lshr_b32 s82, s82, 9")
        a("s_lshl_b32 s80, s80, 8"); a("s_lshl_b32 s81, s81, 8"); a("s_lshl_b32 s82, s82, 8")
        a("s_lshl_b32 s57, s20, 2"); a("s_add_u32 s82, s82, s57")
        a("v_and_b32 v24, 15, v1"); a("v_lshlrev_b32 v24, 2, v24")
        a("v_add_u32 v25, s80, v24"); a("v_add_u32 v26, s81, v24"); a("v_mov_b32 v27, s82")
        a("v_cmp_gt_u32 vcc, 16, v1"); a("v_cndmask_b32 v24, v26, v25, vcc")
        a("v_cmp_gt_u32 vcc, 32, v1"); a("v_cndmask_b32 v24, v27, v24, vcc")
        a(f"v_add_u32 v24, {FLG_OFF + G_FQ*256}, v24")
        check_or_poll(a, 24, 25, False)
        stamp(a, 16)
        lds_wait(a, 4, 4, 24)
        a("s_lshl_b32 s24, s21, 6"); a("s_lshr_b32 s57, s22, 1"); a("s_lshl_b32 s57, s57, 5"); a("s_add_u32 s24, s24, s57")
        a("s_and_b32 s57, s22, 1"); a("s_add_u32 s24, s24, s57"); a("s_lshl_b32 s24, s24, 12"); a(f"s_add_u32 s24, s24, {KV_OFF}")
        a("s_lshl_b32 s25, s22, 12")
        a("s_lshl_b32 s57, s21, 6"); a("s_add_u32 s57, s57, s71"); a("s_lshl_b32 s57, s57, 11")
        a("s_lshl_b32 s70, s22, 11"); a(f"s_add_u32 m0, s70, {QLOC0}")
        a("s_nop 0")
        a("buffer_load_dwordx4 v6, s[12:15], s57 offen sc1 lds")
        a("buffer_load_dwordx4 v6, s[12:15], s57 offen offset:1024 sc1 lds")
        for st in range(2):
            a(f"s_add_u32 m0, s25, {st*C_SLOT}")
            a("s_nop 0")
            for f in range(4): a(f"buffer_load_dwordx4 v6, s[12:15], s24 offen offset:{1024*f} sc1 lds")
            a("s_add_u32 s24, s24, 8192")
        a("s_waitcnt vmcnt(0)")
        stamp(a, 17)
    else:
        f_setup()
        a("s_lshr_b32 s69, s22, 1")
        vm.wait(("F", 2)); lds_inc(a, 6, 56)
        for f in f_dma(a, vm, 3): f()
        vm.wait("flag0")
        check_or_poll(a, 24, FLG, True)
        epi_loads()
        def pre0():
            lds_inc(a, 4, 56)
            vm.wait("epi")
            waug_build()
            a("s_waitcnt lgkmcnt(0)")
            lds_inc(a, 9, 56)
            lds_wait(a, 9, 4, 56)
        tile(0, 0, [], pre_aug=pre0)
        vm.wait(("F", 1)); lds_inc(a, 5, 24)
        lds_wait(a, 5, 4, 24)
        tile(1, 1, gelu_ops(0, 0))
        vm.wait(("F", 3)); lds_inc(a, 7, 24)
        sk, done = L("F3SK"), L("F3D")
        a("s_and_b32 s57, s21, 1"); a("s_cmp_eq_u32 s57, s69"); a(f"s_cbranch_scc0 {sk}")
        lds_wait(a, 7, 4, 24)
        tile(3, 0, gelu_ops(1, 1))
        for f in gelu_ops(3, 0): f()
        a(f"s_branch {done}")
        a.label(sk)
        for f in gelu_ops(1, 1): f()
        a.label(done)
        stamp(a, 4)
        a("s_waitcnt vmcnt(0)")
        stamp(a, 5)

C_SLOT = 16384; XCH = 16384
DSLOT = [65536, 98304, 131072, 0, 32768]
AFH = 128
AFO = 96

def phase_cd(a):
    a("s_and_b32 s57, s2, 7"); a("s_lshr_b32 s58, s2, 3"); a("s_and_b32 s59, s58, 3")
    a("s_lshl_b32 s42, s57, 2"); a("s_add_u32 s42, s42, s59")
    a("s_lshr_b32 s43, s58, 2")
    a("s_min_u32 s31, s43, 6"); a("s_lshl_b32 s31, s31, 7")
    srd(a, 8, 48, W2_BYTES)
    srd(a, 16, 40, WO_BYTES)
    a("v_lshrrev_b32 v5, 5, v1"); a("v_lshlrev_b32 v5, 2, v5"); a("v_bfe_u32 v7, v1, 2, 2"); a("v_add_u32 v5, v5, v7")
    a("v_mul_u32_u24 v5, 896, v5"); a("v_bfe_u32 v7, v1, 4, 1"); a("v_lshl_add_u32 v5, v7, 6, v5")
    a("v_and_b32 v7, 3, v1"); a("v_lshl_add_u32 v5, v7, 4, v5")
    a("s_lshl_b32 s27, s42, 1"); a("s_add_u32 s27, s27, s26")
    a("s_mul_i32 s28, s27, 112"); a("s_mul_i32 s57, s22, 28"); a("s_add_u32 s28, s28, s57")
    a("s_lshl_b32 s28, s28, 10"); a(f"s_add_u32 s28, s28, {HF_OFF}")
    a("s_lshl_b32 s29, s27, 15"); a("s_lshl_b32 s57, s22, 13"); a("s_add_u32 s29, s29, s57"); a(f"s_add_u32 s29, s29, {OF_OFF}")
    a("s_mul_i32 s30, s22, 28"); a("s_lshl_b32 s57, s26, 1"); a("s_add_u32 s30, s30, s57")
    a(f"s_mul_i32 s30, s30, {16*896}"); a("s_add_u32 s30, s30, s31")
    a("s_lshl_b32 s32, s22, 2"); a("s_add_u32 s32, s32, s26"); a(f"s_mul_i32 s32, s32, {28*896}"); a("s_add_u32 s32, s32, s31")
    a("s_lshl_b32 s33, s22, 13"); a("s_lshl_b32 s57, s26, 12"); a("s_add_u32 s33, s33, s57")
    a("s_lshr_b32 s57, s42, 1"); a("s_lshl_b32 s57, s57, 8")
    a("v_and_b32 v8, 15, v1"); a("v_lshlrev_b32 v8, 2, v8")
    a("s_lshl_b32 s58, s27, 8")
    a("v_add_u32 v9, s58, v8"); a(f"v_add_u32 v9, {FLG_OFF + G_FO*256}, v9")
    a("v_add_u32 v8, s57, v8"); a(f"v_add_u32 v8, {FLG_OFF + G_FH*256}, v8")
    srd(a, 80, 50, B2_BYTES)
    srd(a, 84, 52, OUT_BYTES)
    tr_lane_addr(a, 12, 13, 9)
    a("s_lshl_b32 s57, s22, 13"); a("v_add_u32 v12, s57, v12"); a("v_add_u32 v13, 0x10000, v12"); a("v_add_u32 v14, 0x20000, v12")
    a("s_lshr_b32 s34, s22, 1"); a("s_lshl_b32 s34, s34, 6"); a("s_add_u32 s34, s34, s31")
    a("s_and_b32 s35, s22, 1"); a("s_lshl_b32 s35, s35, 5"); a("s_add_u32 s34, s34, s35")
    a("v_lshrrev_b32 v15, 5, v1"); a("v_lshlrev_b32 v15, 3, v15"); a("v_add_u32 v15, s34, v15")
    a("v_and_b32 v11, 31, v1"); a("s_lshl_b32 s57, s27, 5"); a("v_add_u32 v11, s57, v11")
    a("v_mul_u32_u24 v11, 896, v11"); a("v_add_u32 v11, v11, v15")
    vm = DualVM(a)
    def d_dma(c):
        slot = DSLOT[c % 5]
        ops = []
        for kk in range(2):
            for hh in range(2):
                def f(kk=kk, hh=hh):
                    a(f"s_add_u32 m0, s33, {slot + kk*2048 + hh*1024}")
                    if c < 7:
                        a(f"s_add_u32 s57, s30, {((4*c + kk)*16 + 8*hh)*896}")
                        vm.op("buffer_load_dwordx4 v5, s[8:11], s57 offen lds", ("dst", c))
                    else:
                        a(f"s_add_u32 s57, s32, {(2*(c-7)*28 + 16*kk + 8*hh)*896}")
                        vm.op("buffer_load_dwordx4 v5, s[16:19], s57 offen lds", ("dst", c))
                ops.append(f)
        return ops
    a("s_mul_i32 s44, s22, 28"); a(f"s_mul_i32 s44, s44, {16*896}"); a("s_add_u32 s44, s44, s31")
    a("s_lshl_b32 s45, s22, 13")
    def d_pf(c, part):
        def f(v):
            for ks in (2*part, 2*part+1):
                for hh in range(2):
                    a(f"s_add_u32 m0, s45, {DSLOT[c] + ks*2048 + hh*1024}")
                    a(f"s_add_u32 s57, s44, {((4*c + ks)*16 + 8*hh)*896}")
                    v.op("buffer_load_dwordx4 v5, s[8:11], s57 offen lds", ("dst", c))
        return f
    def h_load(lk):
        def f():
            a(f"s_add_u32 s57, s28, {lk*1024}")
            vm.op(f"buffer_load_dwordx4 {vr(AFH+4*lk,4)}, v6, s[12:15], s57 offen sc1", ("h", lk))
        return f
    def kv_dma(st):
        def f(v):
            a(f"s_add_u32 m0, s25, {(st & 3)*C_SLOT}")
            a("s_nop 0")
            for q in range(4): v.op(f"buffer_load_dwordx4 v6, s[12:15], s24 offen offset:{1024*q} sc1 lds", ("kv", st))
            a("s_add_u32 s24, s24, 8192")
        return f
    QF = 112
    KF = [16, 24]; VF = [32, 40]; P = 48; S = [64, 80]; O = 96
    VA = 2
    a("s_lshl_b32 s57, s26, 13"); a(f"v_add_u32 v{VA}, s57, v6")
    for r in range(16): a(f"v_mov_b32 v{O+r}, 0")
    for r in range(8):
        a(f"v_mov_b32 v{P+r}, 0"); a(f"v_mov_b32 v{VF[1]+r}, 0")
    a("s_lshl_b32 s57, s22, 11"); a(f"s_add_u32 s57, s57, {QLOC0}"); a("v_add_u32 v7, s57, v6")
    a("s_barrier")
    stamp(a, 6, vm)
    vm.split([kv_dma(2), kv_dma(3)], [])
    nfh = L("NFH")
    a("s_cmp_eq_u32 s3, 4"); a(f"s_cbranch_scc0 {nfh}")
    flag_off(a, 60, G_FH, 20, 21)
    set_flag(a, 60, 56)
    a.label(nfh)
    vm.count()
    a(f"ds_read_b128 {vr(QF,4)}, v7"); a(f"ds_read_b128 {vr(QF+4,4)}, v7 offset:1024")
    a(f"ds_read_b128 {vr(KF[1],4)}, v6"); a(f"ds_read_b128 {vr(KF[1]+4,4)}, v6 offset:1024")
    a(f"ds_read_b128 {vr(KF[0],4)}, v{VA}"); a(f"ds_read_b128 {vr(KF[0]+4,4)}, v{VA} offset:1024")
    a("s_waitcnt lgkmcnt(2)")
    a(f"v_mfma_f32_32x32x16_bf16 {vr(S[1],16)}, {vr(KF[1],4)}, {vr(QF,4)}, 0")
    a(f"v_mfma_f32_32x32x16_bf16 {vr(S[1],16)}, {vr(KF[1]+4,4)}, {vr(QF+4,4)}, {vr(S[1],16)}")
    s1 = S[1]
    a(f"v_max3_f32 v56, v{s1}, v{s1+1}, v{s1+2}")
    for r in range(3, 15, 2): a(f"v_max3_f32 v56, v56, v{s1+r}, v{s1+r+1}")
    a(f"v_max_f32 v56, v56, v{s1+15}")
    a("v_mov_b32 v57, v56"); a("v_mov_b32 v58, v56"); a("v_permlane32_swap_b32 v57, v58"); a("v_max_f32 v56, v57, v58")
    a("v_cvt_pk_bf16_f32 v57, v56, v56"); a("v_and_b32 v57, 0xffff0000, v57"); a("v_sub_f32 v58, v56, v57")
    a("v_cvt_pk_bf16_f32 v59, v58, v58"); a("v_and_b32 v59, 0xffff0000, v59"); a("v_sub_f32 v58, v58, v59")
    a("v_cvt_pk_bf16_f32 v60, -v57, -v59"); a("v_mov_b32 v61, 0"); a("v_cvt_pk_bf16_f32 v61, -v58, v61")
    a("v_cmp_le_u32 vcc, 32, v1")
    a(f"v_cndmask_b32 v{QF+6}, v{QF+6}, v60, vcc"); a(f"v_cndmask_b32 v{QF+7}, v{QF+7}, v61, vcc")
    a("s_waitcnt lgkmcnt(0)")
    a(f"v_mfma_f32_32x32x16_bf16 {vr(S[0],16)}, {vr(KF[0],4)}, {vr(QF,4)}, 0")
    a(f"v_mfma_f32_32x32x16_bf16 {vr(S[0],16)}, {vr(KF[0]+4,4)}, {vr(QF+4,4)}, {vr(S[0],16)}")
    def addr(u, f):
        u = min(u, 31)
        st, tt = u >> 1, u & 1
        return f"v{VA} offset:{(st & 3)*C_SLOT + tt*4096 + f*1024}"
    a(f"ds_read_b128 {vr(KF[1],4)}, {addr(1,0)}"); a(f"ds_read_b128 {vr(KF[1]+4,4)}, {addr(1,1)}")
    a(f"ds_read_b128 {vr(VF[0],4)}, {addr(0,2)}"); a(f"ds_read_b128 {vr(VF[0]+4,4)}, {addr(0,3)}")
    stamp(a, 7, vm)
    sched = {st: [] for st in range(16)}
    hisched = {st: [] for st in range(16)}
    if "nopf" not in ABL:
        def warm(part):
            def f(v):
                a("s_and_b32 s57, s42, 3")
                if part < 2:
                    a("s_mul_i32 s57, s57, 448"); a("s_mul_i32 s58, s22, 112"); a("s_add_u32 s57, s57, s58")
                    if part == 1: a("s_add_u32 s57, s57, 48")
                    a("v_add_u32 v62, s57, v1"); a("v_mul_u32_u24 v62, 896, v62")
                    v.op("buffer_load_dword v63, v62, s[8:11], s31 offen")
                else:
                    a("s_mul_i32 s57, s57, 112"); a("s_mul_i32 s58, s22, 28"); a("s_add_u32 s57, s57, s58")
                    a("v_min_u32 v62, 27, v1"); a("v_add_u32 v62, s57, v62"); a("v_mul_u32_u24 v62, 896, v62")
                    v.op("buffer_load_dword v63, v62, s[16:19], s31 offen")
            return f
        if 'nowarmc' not in ABL:
            hisched[0].append(warm(0)); hisched[1].append(warm(1)); hisched[2].append(warm(2))
        for c in range(3):
            hisched[3+2*c].append(d_pf(c, 0)); hisched[4+2*c].append(d_pf(c, 1))
        def fh_load(): vm.op("buffer_load_dword v10, v8, s[12:15], 0 offen sc0 sc1", "fh")
        sched[3].append(fh_load)
        def res_loads():
            vm.op("buffer_load_dwordx2 v[240:241], v11, s[4:7], 0 offen")
            vm.op("buffer_load_dwordx2 v[242:243], v11, s[4:7], 0 offen offset:16")
            vm.op("buffer_load_dwordx2 v[244:245], v15, s[80:83], 0 offen")
            vm.op("buffer_load_dwordx2 v[246:247], v15, s[80:83], 0 offen offset:16", "res")
        sched[14].append(res_loads)
        lk = 0
        if 'hlate' in ABL:
            pass
        else:
            for st in range(7, 14):
                for _ in range(4):
                    sched[st].append(h_load(lk)); lk += 1
    def PR(u):
        l1, l2 = L("PR"), L("PR")
        a("s_cmp_eq_u32 s26, 0"); a(f"s_cbranch_scc1 {l1}")
        a(f"s_setprio {(u & 1)}"); a(f"s_branch {l2}")
        a.label(l1); a(f"s_setprio {1 - (u & 1)}")
        a.label(l2)
    for u in range(32):
        st, tt = u >> 1, u & 1
        z = u & 1
        sc = S[z]; sn = S[z ^ 1]
        extra = []
        if tt == 0:
            lo_ops = []
            if st > 0:
                if st + 1 <= 15 and st + 1 >= 2:
                    vm.split([lambda v, st=st: v.wait(("kv", st+1))], [])
                if st <= 14: a("s_barrier")
                if st + 3 <= 15: lo_ops.append(kv_dma(st+3))
            if lo_ops or hisched[st]:
                extra.append(lambda lo_ops=lo_ops, st=st: vm.split(lo_ops, hisched[st]))
            if st == 6 and "nopf" not in ABL:
                vm.wait("fh")
                check_or_poll(a, 8, 10, True)
        half = sched[st][: (len(sched[st])+1)//2] if tt == 0 else sched[st][(len(sched[st])+1)//2:]
        extra += half
        E = lambda k: a(f"v_exp_f32 v{sc+k}, v{sc+k}")
        Pk = lambda k: a(f"v_cvt_pk_bf16_f32 v{P+k}, v{sc+2*k}, v{sc+2*k+1}")
        def X(n=1):
            for _ in range(n):
                if extra: extra.pop(0)()
        if PRIO: PR(u)
        E(0); E(1)
        a(f"v_mfma_f32_32x32x16_bf16 {vr(O,16)}, {vr(VF[z^1]+4,4)}, {vr(P+4,4)}, {vr(O,16)}")
        a(f"ds_read_b128 {vr(KF[z],4)}, {addr(u+2,0)}"); a(f"ds_read_b128 {vr(KF[z]+4,4)}, {addr(u+2,1)}")
        E(2); Pk(0); E(3); X(); E(4); Pk(1)
        a("s_waitcnt lgkmcnt(4)")
        a(f"v_mfma_f32_32x32x16_bf16 {vr(sn,16)}, {vr(KF[z^1],4)}, {vr(QF,4)}, 0")
        a(f"ds_read_b128 {vr(VF[z^1],4)}, {addr(u+1,2)}"); a(f"ds_read_b128 {vr(VF[z^1]+4,4)}, {addr(u+1,3)}")
        E(5); E(6); Pk(2); X(); E(7); E(8); Pk(3)
        a(f"v_mfma_f32_32x32x16_bf16 {vr(sn,16)}, {vr(KF[z^1]+4,4)}, {vr(QF+4,4)}, {vr(sn,16)}")
        E(9); E(10); Pk(4); X(); E(11)
        a("s_waitcnt lgkmcnt(4)")
        a(f"v_mfma_f32_32x32x16_bf16 {vr(O,16)}, {vr(VF[z],4)}, {vr(P,4)}, {vr(O,16)}")
        E(12); Pk(5); E(13); X(len(extra)); E(14); Pk(6); E(15)
        a("s_nop 0")
        Pk(7)
    stamp(a, 8, vm)
    a("s_waitcnt lgkmcnt(0)")
    a("s_nop 1")
    a(f"v_mfma_f32_32x32x16_bf16 {vr(O,16)}, {vr(VF[1]+4,4)}, {vr(P+4,4)}, {vr(O,16)}")
    a("s_lshl_b32 s57, s22, 12"); a(f"s_add_u32 s57, s57, {XCH}"); a("v_add_u32 v7, s57, v6")
    a("s_lshl_b32 s57, s20, 2"); a("s_add_u32 s57, s57, s22"); a("s_lshl_b32 s60, s57, 8")
    a("s_lshl_b32 s58, s21, 2"); a("s_add_u32 s60, s60, s58"); a(f"s_add_u32 s60, s60, {FLG_OFF + G_FO*256}")
    a("s_lshl_b32 s57, s57, 4"); a("s_add_u32 s57, s57, s21"); a("s_lshl_b32 s57, s57, 11"); a(f"s_add_u32 s61, s57, {OF_OFF}")
    a("s_cmp_eq_u32 s26, 0")
    a("s_cselect_b32 s61, s61, 0x7fffff00")
    a("s_cbranch_scc1 C_LO")
    for q in range(4): a(f"ds_write_b128 v7, {vr(O+4*q,4)} offset:{1024*q}")
    if "nopf" not in ABL: vm.hi.wait(("dst", 2))
    a("s_waitcnt lgkmcnt(0)")
    a("s_barrier")
    a("s_branch C_DONE")
    a.label("C_LO")
    a("s_barrier")
    for q in range(4): a(f"ds_read_b128 {vr(64+4*q,4)}, v7 offset:{1024*q}")
    a("s_waitcnt lgkmcnt(0)")
    for r in range(16): a(f"v_add_f32 v{O+r}, v{O+r}, v{64+r}")
    a(f"v_mov_b32 v57, v{O+12}"); a(f"v_mov_b32 v58, v{O+12}"); a("v_permlane32_swap_b32 v57, v58")
    a("v_rcp_f32 v58, v58"); a("v_cmp_gt_u32 vcc, 32, v1"); a("v_cndmask_b32 v59, 0, v58, vcc")
    for r in range(12): a(f"v_mul_f32 v{O+r}, v58, v{O+r}")
    for r in range(12, 16): a(f"v_mul_f32 v{O+r}, v59, v{O+r}")
    for r in range(8): a(f"v_cvt_pk_bf16_f32 v{56+r}, v{O+2*r}, v{O+2*r+1}")
    a.label("C_DONE")
    vm.op("buffer_store_dwordx4 v[56:59], v6, s[12:15], s61 offen sc1")
    vm.op("buffer_store_dwordx4 v[60:63], v6, s[12:15], s61 offen offset:1024 sc1", "ost")
    stamp(a, 9, vm)
    idle = L("IDLE")
    a("s_cmp_eq_u32 s43, 7")
    a(f"s_cbranch_scc0 {idle}")
    a("s_waitcnt vmcnt(0)")
    a("s_cmp_eq_u32 s26, 0"); a("s_cbranch_scc0 K_END")
    set_flag(a, 60, 56)
    a("s_branch K_END")
    a.label(idle)
    if "nopf" in ABL:
        check_or_poll(a, 8, 10, False)
        for c in range(3):
            for f in d_dma(c): f()
        for lk in range(28): h_load(lk)()
    for f in d_dma(4): f()
    DLA = 4
    WF = [[16+8*q, 20+8*q] for q in range(5)]
    ACCD = [64, 80]
    for t in range(2):
        for r in range(16): a(f"v_mov_b32 v{ACCD[t]+r}, 0")
    def dreads(g):
        c, ks, z = g >> 2, g & 3, g % 5
        base = DSLOT[c % 5] + ks*2048
        for t in range(2):
            off = base + t*256
            reg = 12 + (off >> 16); off &= 0xffff
            assert off + 1024 <= 65535
            a(f"ds_read_b64_tr_b16 {vr(WF[z][t],2)}, v{reg} offset:{off}")
            a(f"ds_read_b64_tr_b16 {vr(WF[z][t]+2,2)}, v{reg} offset:{off+1024}")
    def dcompute(g, extra=()):
        z = g % 5
        af = AFH + 4*(28*0 + g) if g < 28 else AFO + 4*(g-28)
        extra = list(extra)
        for t in range(2):
            a(f"v_mfma_f32_32x32x16_bf16 {vr(ACCD[t],16)}, {vr(WF[z][t],4)}, {vr(af,4)}, {vr(ACCD[t],16)}")
            k = (len(extra) + (2 - t) - 1) // (2 - t)
            for f in extra[:k]: f()
            extra = extra[k:]
    if "nopf" in ABL:
        vm.wait(("h", 27)); a("s_barrier")
    if 'hlate' in ABL:
        for lk in range(28): h_load(lk)()
    stamp(a, 10, vm)
    vm.wait(("h", 27))
    for g in range(DLA): dreads(g)
    for g in range(36):
        c, ks = g >> 2, g & 3
        extra = []
        if ks == 0 and c < 8:
            if c + 1 >= 3: vm.wait(("dst", c+1))
            if c > 0 or True: a("s_barrier")
            if c == 0: extra += d_dma(3)
            if c >= 1 and c + 4 <= 8: extra += d_dma(c+4)
        if g + DLA < 36: dreads(g+DLA)
        after = min(g + DLA, 35) - g
        a(f"s_waitcnt lgkmcnt({min(4*after, 15)})")
        if g == 9:
            vm.wait("ost")
            nf = L("NFO")
            a("s_cmp_eq_u32 s26, 0"); a(f"s_cbranch_scc0 {nf}")
            set_flag(a, 60, 56)
            a.label(nf)
            def fo(): vm.op("buffer_load_dword v10, v9, s[12:15], 0 offen sc0 sc1", "fo")
            extra.append(fo)
        if g == 17:
            vm.wait("fo")
            check_or_poll(a, 9, 10, True)
            stamp(a, 11, vm)
            for q in range(8):
                def f(q=q):
                    a(f"s_add_u32 s57, s29, {q*1024}")
                    vm.op(f"buffer_load_dwordx4 {vr(AFO+4*q,4)}, v6, s[12:15], s57 offen sc1", ("o", q))
                extra.append(f)
        if g == 28: vm.wait(("o", 7))
        dcompute(g, extra)
    stamp(a, 12, vm)
    a("s_barrier")
    a("s_lshl_b32 s57, s26, 15"); a("s_lshl_b32 s58, s22, 11"); a("s_add_u32 s57, s57, s58"); a("v_add_u32 v14, s57, v6")
    for q in range(4):
        acc = ACCD[q >> 1] + 8*(q & 1)
        k1, k2 = L("SKW"), L("SKX")
        a(f"s_cmp_eq_u32 s22, {q}"); a(f"s_cbranch_scc1 {k1}")
        a(f"ds_write_b128 v14, {vr(acc,4)} offset:{q*8192}"); a(f"ds_write_b128 v14, {vr(acc+4,4)} offset:{q*8192+1024}")
        a(f"s_branch {k2}")
        a.label(k1)
        for r in range(8): a(f"v_mov_b32 v{96+r}, v{acc+r}")
        a.label(k2)
    a("s_waitcnt lgkmcnt(0)")
    a("s_barrier")
    a("s_lshl_b32 s57, s26, 15"); a("s_lshl_b32 s58, s22, 13"); a("s_add_u32 s57, s57, s58"); a("v_add_u32 v14, s57, v6")
    for i in range(1, 4):
        a(f"s_add_u32 s57, s22, {i}"); a("s_and_b32 s57, s57, 3"); a("s_lshl_b32 s57, s57, 11"); a("v_add_u32 v15, s57, v14")
        a(f"ds_read_b128 {vr(104+8*(i-1),4)}, v15"); a(f"ds_read_b128 {vr(108+8*(i-1),4)}, v15 offset:1024")
    a("s_waitcnt vmcnt(0) lgkmcnt(0)")
    for r in range(8):
        a(f"v_add_f32 v{96+r}, v{96+r}, v{104+r}"); a(f"v_add_f32 v{112+r}, v{112+r}, v{120+r}")
    for r in range(8): a(f"v_add_f32 v{96+r}, v{96+r}, v{112+r}")
    for g in range(2):
        for w in range(2):
            for src in (240 + 2*g + w, 244 + 2*g + w):
                a(f"v_lshlrev_b32 v15, 16, v{src}"); a(f"v_add_f32 v{96+4*g+2*w}, v{96+4*g+2*w}, v15")
                a(f"v_and_b32 v15, 0xffff0000, v{src}"); a(f"v_add_f32 v{96+4*g+2*w+1}, v{96+4*g+2*w+1}, v15")
    for r in range(4): a(f"v_cvt_pk_bf16_f32 v{20+r}, v{96+2*r}, v{96+2*r+1}")
    a("buffer_store_dwordx2 v[20:21], v11, s[84:87], 0 offen")
    a("buffer_store_dwordx2 v[22:23], v11, s[84:87], 0 offen offset:16")
    ne = L("NEP")
    a("s_or_b32 s57, s2, s3"); a("s_cmp_eq_u32 s57, 0"); a(f"s_cbranch_scc0 {ne}")
    a(f"s_mov_b32 s60, {EPOCH_OFF}")
    set_flag(a, 60, 40)
    a.label(ne)
    if STAMP: a("s_waitcnt vmcnt(0)")
    stamp(a, 13)

PRIO = int(os.environ.get('PRIO','0'))
def kernel_desc(name, vgpr, sgpr=102):
    return f""".amdhsa_kernel {name}
  .amdhsa_next_free_vgpr {vgpr}
  .amdhsa_next_free_sgpr {sgpr}
  .amdhsa_accum_offset {(vgpr+3)//4*4}
  .amdhsa_group_segment_fixed_size 0
  .amdhsa_kernarg_size 88
  .amdhsa_user_sgpr_count 2
  .amdhsa_user_sgpr_kernarg_segment_ptr 1
  .amdhsa_system_sgpr_workgroup_id_x 1
  .amdhsa_float_denorm_mode_32 3
.end_amdhsa_kernel
"""
HEADER = open("cdna_kernels/%s.s.ref" % NAME).read().split("; Override launch")[0]

def main(out):
    txt = HEADER
    txt += f"; @launch grid=(256,1,1) block=(512,1,1) lds={LDS_BYTES}\n"
    txt += '.amdgcn_target "amdgcn-amd-amdhsa--gfx950"\n.text\n'
    a = Asm()
    gen(a)
    a.fix_hazards(verbose=bool(os.environ.get("VERB")))
    print("instructions:", sum(1 for x in a.ins if x.kind not in ("label","directive")), "nop fixes:", a.nops_added)
    txt += f".globl {KNAME}\n.p2align 8\n.type {KNAME},@function\n" + a.text()
    txt += '.section .rodata,"a"\n.p2align 6\n' + kernel_desc(KNAME, 256 if STAMP else NVGPR)
    open(out, "w").write(txt)

if __name__ == "__main__":
    main(sys.argv[1] if len(sys.argv) > 1 else "g.s")
```

```python
import sys, math, os, struct
from asmlib import Asm, vr, sr

NAME = "parallel_sum__mha_block__dense_activation_gelu__prompt"
KNAME = NAME + "_kernel"
X_BYTES = 2048*896; WQKV_BYTES = 448*2688; WO_BYTES = 448*896; W1_BYTES = 448*3584
B1_BYTES = 3584; W2_BYTES = 1792*896; B2_BYTES = 896; OUT_BYTES = 2048*896
QF_OFF = 0; KV_OFF = 2<<20; HF_OFF = 6<<20; OF_OFF = 13<<20
STAMP_OFF = 15<<20
REC_OFF = 16<<20; CSP_OFF = REC_OFF + 65536; FLG_OFF = (16<<20) + (512<<10); EPOCH_OFF = FLG_OFF + 32768
WS_BYTES = 17<<20
G_F0R, G_F0C, G_FQ, G_FH, G_FO = 0, 16, 32, 48, 64
LOG2E = 1.4426950408889634
CQ = LOG2E / math.sqrt(28.0)
GC0 = -2.0*math.sqrt(2.0/math.pi)*LOG2E
GC1 = GC0*0.044715
def f2u(f): return struct.unpack("<I", struct.pack("<f", f))[0]
def hexf(f): return "0x%08x" % f2u(f)
STAMP = int(os.environ.get("STAMP", "0"))
ABL = os.environ.get("ABL", "")
NVGPR = 248
SV = 248
LDS_BYTES = 163840

class VM:
    def __init__(self, a): self.a = a; self.n = 0; self.tags = {}
    def op(self, text, tag=None):
        self.a(text); self.n += 1
        if tag is not None: self.tags[tag] = self.n
    def mark(self, tag): self.tags[tag] = self.n
    def wait(self, tag, extra=""):
        k = self.n - self.tags[tag]
        assert k <= 63, (tag, k)
        self.a(f"s_waitcnt vmcnt({k}) {extra}".strip())
    def count(self): self.n += 1

class DualVM:
    def __init__(self, a): self.a = a; self.lo = VM(a); self.hi = VM(a)
    def op(self, text, tag=None):
        self.a(text)
        for v in (self.lo, self.hi):
            v.n += 1
            if tag is not None: v.tags[tag] = v.n
    def count(self):
        self.lo.n += 1; self.hi.n += 1
    def mark(self, tag):
        self.lo.mark(tag); self.hi.mark(tag)
    def split(self, lo_fns, hi_fns):
        a = self.a
        if not lo_fns and not hi_fns: return
        l1, l2 = L("SPL"), L("SPL")
        a("s_cmp_eq_u32 s26, 0"); a(f"s_cbranch_scc0 {l1}")
        for f in lo_fns: f(self.lo)
        if hi_fns: a(f"s_branch {l2}")
        a.label(l1)
        for f in hi_fns: f(self.hi)
        if hi_fns: a.label(l2)
    def wait(self, tag, extra=""):
        kl = self.lo.n - self.lo.tags[tag]; kh = self.hi.n - self.hi.tags[tag]
        if kl == kh: self.lo.wait(tag, extra)
        else: self.split([lambda v: v.wait(tag, extra)], [lambda v: v.wait(tag, extra)])

def stamp(a, slot, vm=None, tmp=88):
    if not STAMP: return
    a(f"s_memrealtime s[{tmp}:{tmp+1}]")
    a(f"s_memtime s[{tmp+2}:{tmp+3}]")
    a(f"s_lshl_b32 s{tmp+7}, s2, 3")
    a(f"s_add_u32 s{tmp+6}, s3, s{tmp+7}")
    a(f"s_lshl_b32 s{tmp+6}, s{tmp+6}, 9")
    a(f"s_add_u32 s{tmp+6}, s{tmp+6}, {STAMP_OFF + slot*16}")
    a("s_waitcnt lgkmcnt(0)")
    for k in range(4): a(f"v_mov_b32 v{SV+k}, s{tmp+k}")
    a(f"v_mov_b32 v{SV+4}, 0")
    a(f"s_mov_b64 s[{tmp}:{tmp+1}], exec")
    a("s_mov_b64 exec, 1")
    a(f"buffer_store_dwordx4 v[{SV}:{SV+3}], v{SV+4}, s[12:15], s{tmp+6} offen")
    a(f"s_mov_b64 exec, s[{tmp}:{tmp+1}]")
    a("s_nop 1")
    if vm is not None: vm.count()

def tick(a, idx):
    if STAMP and "tick" in ABL: a(f"s_memtime s[{88+2*idx}:{89+2*idx}]")
def tick_flush(a, n, slot0, vm=None):
    if not (STAMP and "tick" in ABL): return
    a("s_waitcnt lgkmcnt(0)")
    a("s_lshl_b32 s58, s2, 3"); a("s_add_u32 s57, s3, s58"); a("s_lshl_b32 s57, s57, 9")
    for k in range(n):
        a(f"v_mov_b32 v{SV}, s{88+2*k}"); a(f"v_mov_b32 v{SV+1}, 0"); a(f"v_mov_b32 v{SV+2}, s{88+2*k}"); a(f"v_mov_b32 v{SV+3}, s{89+2*k}")
        a(f"v_mov_b32 v{SV+4}, 0")
        a(f"s_add_u32 s58, s57, {STAMP_OFF + (slot0+k)*16}")
        a("s_mov_b64 exec, 1")
        a(f"buffer_store_dwordx4 v[{SV}:{SV+3}], v{SV+4}, s[12:15], s58 offen")
        a("s_mov_b64 exec, -1")
        a("s_nop 1")
        if vm is not None: vm.count()

def srd(a, s, ptr, nbytes):
    a(f"s_mov_b32 s{s}, s{ptr}")
    a(f"s_and_b32 s{s+1}, s{ptr+1}, 0xffff")
    a(f"s_mov_b32 s{s+2}, {nbytes}")
    a(f"s_mov_b32 s{s+3}, 0x20000")

TAG = 56
uid = [0]
def L(p):
    uid[0] += 1
    return f"{p}_{uid[0]}"

def check_or_poll(a, voff, tv, have_value):
    lp = L("POLL"); ld = L("POLLD"); lc = L("POLLC")
    a("s_mov_b32 s57, 0")
    if have_value: a(f"s_branch {lc}")
    a.label(lp)
    a(f"buffer_load_dword v{tv}, v{voff}, s[12:15], 0 offen sc0 sc1")
    a("s_waitcnt vmcnt(0)")
    a.label(lc)
    a(f"v_cmp_ne_u32 vcc, s{TAG}, v{tv}")
    a("s_nop 1")
    a("s_cmp_eq_u64 vcc, 0")
    a(f"s_cbranch_scc1 {ld}")
    a("s_add_u32 s57, s57, 1")
    a("s_cmp_gt_u32 s57, 0x40000")
    a(f"s_cbranch_scc1 {ld}")
    a("s_sleep 1")
    a(f"s_branch {lp}")
    a.label(ld)

def set_flag(a, soff_sgpr, tv):
    a(f"v_mov_b32 v{tv}, s{TAG}")
    a(f"v_mov_b32 v{tv+1}, 0")
    a("s_mov_b64 s[58:59], exec")
    a("s_mov_b64 exec, 1")
    a(f"buffer_store_dword v{tv}, v{tv+1}, s[12:15], s{soff_sgpr} offen sc0 sc1")
    a("s_mov_b64 exec, s[58:59]")

ASLOT = [32768, 65536, 98304, 131072]
RF0 = 0
CNT0 = 28672
TRS = ASLOT[3]
WAUGL = ASLOT[3] + 8192
CNT = ASLOT[3] + 24576
SQL = ASLOT[3] + 24832
CSL = ASLOT[3] + 26624
QLOC0 = ASLOT[3] + 16384
FLOC = [RF0, ASLOT[0], ASLOT[1], ASLOT[2]]

def wg_signal(a, cnt_idx, nwaves, flag_soff_sgprs, tv, base=None):
    done = L("SIG")
    a(f"v_mov_b32 v{tv}, {(CNT if base is None else base) + 4*cnt_idx}")
    a(f"v_mov_b32 v{tv+1}, 1")
    a("s_mov_b64 s[58:59], exec")
    a("s_mov_b64 exec, 1")
    a(f"ds_add_rtn_u32 v{tv+2}, v{tv}, v{tv+1}")
    a("s_waitcnt lgkmcnt(0)")
    a(f"v_readfirstlane_b32 s57, v{tv+2}")
    a("s_mov_b64 exec, s[58:59]")
    a(f"s_cmp_eq_u32 s57, {nwaves-1}")
    a(f"s_cbranch_scc0 {done}")
    for s in flag_soff_sgprs: set_flag(a, s, tv)
    a.label(done)

def flag_off(a, dst, group_base, grp_sgpr, idx_sgpr):
    a(f"s_lshl_b32 s{dst}, s{grp_sgpr}, 8")
    a(f"s_lshl_b32 s57, s{idx_sgpr}, 2")
    a(f"s_add_u32 s{dst}, s{dst}, s57")
    a(f"s_add_u32 s{dst}, s{dst}, {FLG_OFF + group_base*256}")

def tr_lane_addr(a, dst, tmp, half_shift):
    a(f"v_lshrrev_b32 v{dst}, 5, v1"); a(f"v_lshlrev_b32 v{dst}, {half_shift}, v{dst}")
    a(f"v_bfe_u32 v{tmp}, v1, 2, 2"); a(f"v_lshl_add_u32 v{dst}, v{tmp}, 6, v{dst}")
    a(f"v_bfe_u32 v{tmp}, v1, 4, 1"); a(f"v_lshl_add_u32 v{dst}, v{tmp}, 5, v{dst}")
    a(f"v_and_b32 v{tmp}, 3, v1"); a(f"v_lshl_add_u32 v{dst}, v{tmp}, 3, v{dst}")

def gen(a):
    a.label(KNAME)
    a("s_cmp_ge_u32 s2, 256")
    a("s_cbranch_scc1 K_END")
    a("s_load_dwordx4 s[36:39], s[0:1], 0")
    a("s_load_dwordx2 s[40:41], s[0:1], 16")
    a("s_load_dwordx8 s[44:51], s[0:1], 32")
    a("s_load_dwordx2 s[52:53], s[0:1], 64")
    a("s_load_dwordx2 s[54:55], s[0:1], 80")
    a("s_and_b32 s23, s2, 7")
    a("s_lshr_b32 s24, s2, 3")
    a("s_and_b32 s20, s23, 1"); a("s_lshl_b32 s20, s20, 3"); a("s_and_b32 s25, s24, 7"); a("s_add_u32 s20, s20, s25")
    a("s_lshr_b32 s21, s23, 1"); a("s_lshl_b32 s21, s21, 2"); a("s_lshr_b32 s25, s24, 3"); a("s_add_u32 s21, s21, s25")
    a("v_lshrrev_b32 v2, 6, v0")
    a("v_and_b32 v1, 63, v0")
    a("v_readfirstlane_b32 s3, v2")
    a("v_lshlrev_b32 v6, 4, v1")
    a("s_and_b32 s22, s3, 3")
    a("s_lshr_b32 s26, s3, 2")
    phase_ab_common(a)
    a("s_cmp_ge_u32 s3, 4")
    a("s_cbranch_scc1 AB_B")
    phase_ab(a, False)
    a("s_branch PH_C")
    a.label("AB_B")
    phase_ab(a, True)
    a.label("PH_C")
    phase_cd(a)
    a.label("K_END")
    a("s_endpgm")
    a.label("CODE_END")
    a("s_endpgm")

XA = 8
XB = 12
WA = 16
WB = 240
FA = 20
NDMA = 4
XR = 128

def ab_dma(a, vm, st):
    slot = ASLOT[st % 4]
    ops = []
    for q in range(4):
        def f(q=q):
            a(f"s_add_u32 m0, s27, {slot + q*1024}")
            a(f"s_add_u32 s57, s24, {q*8*896 + st*128}")
            vm.op(f"buffer_load_dwordx4 v{3 + (q & 1)}, s[4:7], s57 offen lds")
        ops.append(f)
    for q in range(4):
        def f(q=q):
            a(f"s_add_u32 m0, s34, {slot + 16384 + q*1024}")
            a(f"s_add_u32 s57, s64, {(st*64 + q*16)*2688}")
            vm.op("buffer_load_dwordx4 v5, s[8:11], s57 offen lds")
        ops.append(f)
    def last(): vm.mark(("st", st))
    ops.append(last)
    return ops

def ab_dma8(a, vm, st):
    slot = ASLOT[st % 4]
    ops = []
    for q in range(2):
        def f(q=q):
            a(f"s_add_u32 m0, s96, {slot + q*1024}")
            a(f"s_add_u32 s57, s97, {q*8*896 + st*128}")
            vm.op(f"buffer_load_dwordx4 v{3 + q}, s[4:7], s57 offen lds")
        ops.append(f)
    for q in range(2):
        def f(q=q):
            a(f"s_add_u32 m0, s98, {slot + 16384 + q*1024}")
            a(f"s_add_u32 s57, s99, {(st*64 + q*16)*2688}")
            vm.op("buffer_load_dwordx4 v5, s[8:11], s57 offen lds", ("st", st) if q == 1 else None)
        ops.append(f)
    return ops

def f_dma(a, vm, t):
    ops = []
    for q in range(7):
        def f(q=q):
            a(f"s_add_u32 m0, s35, {FLOC[t] + q*1024}")
            a(f"s_add_u32 s67, s66, s{60+t}") if q == 0 else a(f"s_add_u32 s67, s67, {16*3584}")
            vm.op("buffer_load_dwordx4 v7, s[16:19], s67 offen lds", ("F", t))
        ops.append(f)
    return ops

def lds_inc(a, idx, tv):
    a(f"v_mov_b32 v{tv}, {CNT + 4*idx}"); a(f"v_mov_b32 v{tv+1}, 1")
    a("s_mov_b64 s[58:59], exec"); a("s_mov_b64 exec, 1")
    a(f"ds_add_u32 v{tv}, v{tv+1}")
    a("s_mov_b64 exec, s[58:59]")

def lds_wait(a, idx, n, tv):
    lw = L("LW")
    a(f"v_mov_b32 v{tv}, {CNT + 4*idx}")
    a.label(lw)
    a(f"ds_read_b32 v{tv+1}, v{tv}")
    a("s_waitcnt lgkmcnt(0)")
    a(f"v_readfirstlane_b32 s57, v{tv+1}")
    a(f"s_cmp_ge_u32 s57, {n}")
    a(f"s_cbranch_scc0 {lw}")

def phase_ab_common(a):
    a("v_lshrrev_b32 v5, 3, v1"); a("v_mul_u32_u24 v5, 896, v5")
    a("v_and_b32 v9, 7, v1"); a("v_lshrrev_b32 v10, 4, v1"); a("v_xor_b32 v9, v9, v10")
    a("v_lshl_add_u32 v3, v9, 4, v5"); a("v_xor_b32 v9, 4, v9"); a("v_lshl_add_u32 v4, v9, 4, v5")
    a("v_lshrrev_b32 v9, 2, v1"); a("v_and_b32 v10, 3, v1"); a("v_lshlrev_b32 v10, 4, v10")
    a("v_mul_u32_u24 v5, 2688, v9"); a("v_add_u32 v5, v5, v10")
    a("v_mul_u32_u24 v7, 3584, v9"); a("v_add_u32 v7, v7, v10")
    a("v_mov_b32 v24, 0x7fffff00"); a("v_cmp_gt_u32 vcc, 56, v1"); a("v_cndmask_b32 v24, v24, v6, vcc")
    a("s_mul_i32 s28, s21, 168")
    a("s_lshr_b32 s32, s21, 1"); a("s_mul_i32 s32, s32, 7")
    a("s_and_b32 s33, s21, 1"); a("s_lshl_b32 s33, s33, 2"); a("s_add_u32 s33, s33, s32")
    a("s_lshl_b32 s60, s33, 6"); a("s_add_u32 s61, s60, 64"); a("s_add_u32 s62, s60, 128")
    a("s_add_u32 s63, s32, 3"); a("s_lshl_b32 s63, s63, 6")
    a("s_lshl_b32 s24, s20, 7"); a("s_lshl_b32 s25, s22, 5"); a("s_add_u32 s24, s24, s25"); a("s_mul_i32 s24, s24, 896")
    a("s_lshl_b32 s27, s22, 12")
    a("s_and_b32 s64, s28, 0xffffffc0")
    a("s_lshl_b32 s57, s22, 6"); a("s_add_u32 s64, s64, s57")
    a("s_lshl_b32 s34, s22, 12")
    a("s_lshl_b32 s96, s3, 11")
    a("s_lshl_b32 s97, s20, 7"); a("s_lshl_b32 s57, s3, 4"); a("s_add_u32 s97, s97, s57"); a("s_mul_i32 s97, s97, 896")
    a("s_lshl_b32 s98, s22, 12"); a("s_lshl_b32 s57, s26, 11"); a("s_add_u32 s98, s98, s57")
    a(f"s_mul_i32 s57, s26, {32*2688}"); a("s_add_u32 s99, s64, s57")
    a(f"s_mul_i32 s66, s22, {7*16*3584}")
    a("s_mul_i32 s35, s22, 7168")
    a("s_mov_b32 s68, s60")
    for t in (1, 2, 3):
        a(f"s_cmp_eq_u32 s22, {t}"); a(f"s_cselect_b32 s68, s{60+t}, s68")
    a("v_lshrrev_b32 v9, 4, v1"); a("v_and_b32 v10, 15, v1"); a("v_lshlrev_b32 v10, 2, v10")
    a(f"v_mul_u32_u24 v25, {7*2688}, v9"); a("v_add_u32 v25, v25, v10")
    a(f"v_mul_u32_u24 v26, {7*3584}, v9"); a("v_add_u32 v26, v26, v10")
    a("s_waitcnt lgkmcnt(0)")
    srd(a, 4, 36, X_BYTES)
    srd(a, 8, 38, WQKV_BYTES)
    srd(a, 16, 44, W1_BYTES)
    srd(a, 12, 54, WS_BYTES)
    srd(a, 76, 46, B1_BYTES)
    a(f"s_add_u32 s58, s54, {EPOCH_OFF}"); a("s_addc_u32 s59, s55, 0")
    a(f"s_load_dword s{TAG}, s[58:59], 0")

def warmups(a, vm):
    if "nopre" in ABL: return
    l1, l2, l3 = L("WU"), L("WU"), L("WU")
    a("s_cmp_eq_u32 s22, 0"); a(f"s_cbranch_scc0 {l1}")
    a("v_min_u32 v9, 8, v1"); a("v_lshlrev_b32 v9, 21, v9")
    a("buffer_load_dword v247, v9, s[12:15], 0 offen sc1")
    a(f"s_branch {l3}")
    a.label(l1)
    a("s_cmp_eq_u32 s22, 1"); a(f"s_cbranch_scc0 {l2}")
    a("v_mov_b32 v9, 0")
    a("global_load_dword v247, v9, s[48:49]")
    a("global_load_dword v247, v9, s[40:41]")
    a("global_load_dword v247, v9, s[52:53]")
    a("global_load_dword v247, v9, s[50:51]")
    a(f"s_branch {l3}")
    a.label(l2)
    a("s_getpc_b64 s[80:81]")
    a.label("PCREF")
    a(f"s_sub_u32 s80, s80, PCREF - {KNAME}"); a("s_subb_u32 s81, s81, 0")
    a("s_lshr_b32 s57, s2, 3"); a("s_lshl_b32 s57, s57, 1"); a("s_and_b32 s58, s22, 1"); a("s_add_u32 s57, s57, s58")
    a("s_lshl_b32 s57, s57, 3")
    a("v_and_b32 v9, 7, v1"); a("v_add_u32 v9, s57, v9"); a("v_lshlrev_b32 v9, 7, v9")
    a(f"v_min_u32 v9, CODE_END - {KNAME} - 4, v9")
    a("global_load_dword v247, v9, s[80:81]")
    a.label(l3)
    vm.count(); vm.count(); vm.count(); vm.count()

def phase_ab(a, isB):
    vm = VM(a)
    stamp(a, 0, vm)
    if not isB:
        for st in range(4):
            for f in ab_dma(a, vm, st): f()
    else:
        warmups(a, vm)
        a(f"s_mul_i32 s57, s20, {28*3584}"); a("s_add_u32 s70, s68, s57")
        for r in range(7):
            a(f"s_add_u32 s57, s70, {r*3584}")
            vm.op(f"buffer_load_dword v{64+r}, v26, s[16:19], s57 offen")
        vm.mark("p0")
    a("v_and_b32 v9, 31, v1"); a("s_lshl_b32 s57, s22, 5"); a("v_add_u32 v9, s57, v9")
    a("v_bfe_u32 v10, v9, 1, 3"); a("v_lshrrev_b32 v11, 5, v1"); a("v_xor_b32 v10, v10, v11")
    a("v_lshlrev_b32 v27, 7, v9")
    a("v_mov_b32 v24, v10")
    for ks in range(4):
        a(f"v_xor_b32 v25, {2*ks}, v24")
        a(f"v_lshl_add_u32 v{XA+ks}, v25, 4, v27")
        a(f"v_add_u32 v{XA+ks}, 0x8000, v{XA+ks}")
        a(f"v_add_u32 v{XB+ks}, 0x10000, v{XA+ks}")
    tr_lane_addr(a, FA, 25, 9)
    a(f"v_add_u32 v{FA+1}, 0x10000, v{FA}"); a(f"v_add_u32 v{FA+2}, 0x10000, v{FA+1}")
    a("s_and_b32 s57, s28, 63")
    a("v_bfe_u32 v24, v1, 4, 1"); a("v_lshlrev_b32 v24, 5, v24")
    a("v_and_b32 v25, 3, v1"); a("v_lshl_add_u32 v24, v25, 3, v24")
    a("v_add_u32 v24, s57, v24")
    a("v_lshrrev_b32 v25, 5, v1"); a("v_lshlrev_b32 v25, 9, v25")
    a("v_bfe_u32 v26, v1, 2, 2"); a("v_lshl_add_u32 v25, v26, 6, v25")
    if isB:
        a("s_min_u32 s57, s22, 2"); a("s_mul_i32 s57, s57, 56"); a("v_add_u32 v24, s57, v24")
    for t in range(1 if isB else 3):
        a(f"v_add_u32 v26, {56*t}, v24")
        a("v_lshrrev_b32 v27, 6, v26"); a("v_lshlrev_b32 v27, 12, v27")
        a("v_and_b32 v26, 63, v26")
        a(f"v_add3_u32 v{WA+t}, v27, v26, v25")
        a(f"v_add_u32 v{WA+t}, {32768+16384}, v{WA+t}")
        a(f"v_add_u32 v{WB+t}, 0x10000, v{WA+t}")
    if not isB:
        WF = [[40, 44, 48], [52, 56, 60], [64, 68, 72]]
        ACC = [80, 96, 112]
        for t in range(3):
            for r in range(16): a(f"v_mov_b32 v{ACC[t]+r}, 0")
    if isB:
        vm.wait("p0", "lgkmcnt(0)")
        a("v_mov_b32 v56, 0"); a("v_mov_b32 v57, 0")
        for r in range(7):
            a(f"v_lshlrev_b32 v26, 16, v{64+r}"); a(f"v_and_b32 v27, 0xffff0000, v{64+r}")
            a("v_add_f32 v56, v56, v26"); a("v_add_f32 v57, v57, v27")
        for reg in (56, 57):
            a(f"v_mov_b32 v58, v{reg}"); a(f"v_mov_b32 v59, v{reg}")
            a("v_permlane32_swap_b32 v58, v59"); a(f"v_add_f32 v{reg}, v58, v59")
            a(f"v_mov_b32 v58, v{reg}"); a(f"v_mov_b32 v59, v{reg}")
            a("v_permlane16_swap_b32 v58, v59"); a(f"v_add_f32 v{reg}, v58, v59")
        a("s_lshl_b32 s57, s21, 4"); a("s_add_u32 s57, s57, s20"); a("s_lshl_b32 s57, s57, 9")
        a("s_lshl_b32 s70, s22, 7"); a("s_add_u32 s57, s57, s70"); a(f"s_add_u32 s57, s57, {CSP_OFF}")
        a("v_and_b32 v26, 15, v1"); a("v_lshlrev_b32 v26, 3, v26")
        a("s_mov_b64 s[58:59], exec"); a("s_mov_b64 exec, 0xffff")
        vm.op("buffer_store_dwordx2 v[56:57], v26, s[12:15], s57 offen sc1", "p0st")
        a("s_mov_b64 exec, s[58:59]")
    else:
        a("s_waitcnt lgkmcnt(0)")
    a(f"s_add_u32 s{TAG}, s{TAG}, 1")
    a("s_lshl_b32 s75, s21, 8"); a("s_lshl_b32 s57, s20, 4"); a("s_add_u32 s75, s75, s57"); a("s_lshl_b32 s57, s22, 2"); a("s_add_u32 s75, s75, s57")
    a(f"s_add_u32 s75, s75, {FLG_OFF + G_F0C*256}")
    a("v_lshlrev_b32 v24, 2, v1")
    a("s_lshl_b32 s57, s21, 8"); a(f"s_add_u32 s57, s57, {FLG_OFF + G_F0C*256}"); a("v_add_u32 v24, s57, v24")
    a("s_lshl_b32 s71, s20, 2"); a("s_add_u32 s71, s71, s22")
    stamp(a, 1, vm)
    REC = 28
    EP = 96
    FLG = 246
    ONES = 36
    CSA = 80
    BW = [40, 44, 48]
    SQ = 52
    def xaddr(g):
        c, ks = g >> 2, g & 3
        s_ = c % 4
        return (f"v{XA+ks} offset:{s_*32768}" if s_ < 2 else f"v{XB+ks} offset:{(s_-2)*32768}")
    def reads(g):
        c, ks = g >> 2, g & 3
        s_ = c % 4
        z = g % 3
        a(f"ds_read_b128 {vr(XR+4*g,4)}, {xaddr(g)}")
        for t in range(1 if isB else 3):
            reg, off = (WA+t, s_*32768) if s_ < 2 else (WB+t, (s_-2)*32768)
            dst = BW[z] if isB else WF[z][t]
            a(f"ds_read_b64_tr_b16 {vr(dst,2)}, v{reg} offset:{off+ks*1024}")
            a(f"ds_read_b64_tr_b16 {vr(dst+2,2)}, v{reg} offset:{off+ks*1024+256}")
    def compute(g, extra=()):
        extra = list(extra)
        z = g % 3
        if isB:
            cc = "0" if g == 0 else vr(CSA,16)
            a(f"v_mfma_f32_32x32x16_bf16 {vr(CSA,16)}, {vr(BW[z],4)}, {vr(ONES,4)}, {cc}")
            for d in range(4):
                x = XR + 4*g + d
                a(f"v_lshlrev_b32 v{56+2*d}, 16, v{x}"); a(f"v_and_b32 v{57+2*d}, 0xffff0000, v{x}")
            for f in extra: f()
            extra = []
            for d in range(8):
                a(f"v_fmac_f32 v{SQ+(d&3)}, v{56+d}, v{56+d}")
            for f in extra: f()
            return
        for r in range(4): a(f"v_cndmask_b32 v{WF[z][0]+r}, v{WF[z][0]+r}, v{ONES}, s[72:73]")
        for t in (1, 2, 0):
            a(f"v_mfma_f32_32x32x16_bf16 {vr(ACC[t],16)}, {vr(WF[z][t],4)}, {vr(XR+4*g,4)}, {vr(ACC[t],16)}")
            for f in extra: f()
            extra = []
    def epi_loads():
        a("v_and_b32 v25, 31, v1"); a("v_lshlrev_b32 v26, 2, v25")
        a("v_lshrrev_b32 v27, 5, v1"); a(f"v_mul_u32_u24 v27, {8*512}, v27"); a("v_add_u32 v26, v26, v27")
        a("s_lshl_b32 s70, s21, 13"); a(f"s_add_u32 s70, s70, {CSP_OFF}")
        a("s_lshl_b32 s57, s22, 7"); a("s_add_u32 s70, s70, s57")
        for q in range(8):
            a(f"s_add_u32 s57, s70, {q*512}")
            vm.op(f"buffer_load_dword v{EP+q}, v26, s[12:15], s57 offen sc1")
        a("v_lshlrev_b32 v25, 1, v25")
        vm.op(f"buffer_load_ushort v{EP+8}, v25, s[76:79], s68 offen")
        vm.mark("epi")
    def waug_build():
        a("v_cmp_gt_u32 vcc, 32, v1")
        C = EP
        a(f"v_add_f32 v{C}, v{C}, v{C+1}"); a(f"v_add_f32 v{C+2}, v{C+2}, v{C+3}")
        a(f"v_add_f32 v{C+4}, v{C+4}, v{C+5}"); a(f"v_add_f32 v{C+6}, v{C+6}, v{C+7}")
        a(f"v_add_f32 v{C}, v{C}, v{C+2}"); a(f"v_add_f32 v{C+4}, v{C+4}, v{C+6}")
        a(f"v_add_f32 v{C}, v{C}, v{C+4}")
        a(f"v_mov_b32 v{C+1}, v{C}"); a(f"v_mov_b32 v{C+2}, v{C}")
        a(f"v_permlane32_swap_b32 v{C+1}, v{C+2}")
        a(f"v_add_f32 v{C}, v{C+1}, v{C+2}")
        a(f"v_cvt_pk_bf16_f32 v{C+1}, v{C}, v{C}"); a(f"v_and_b32 v{C+1}, 0xffff0000, v{C+1}"); a(f"v_sub_f32 v{C+2}, v{C}, v{C+1}")
        wa = C + 4
        a(f"v_cvt_pk_bf16_f32 v{wa}, v{C+1}, v{C+2}"); a(f"v_cndmask_b32 v{wa}, 0, v{wa}, vcc"); a(f"v_mov_b32 v{wa+1}, v{wa}")
        a(f"v_lshl_or_b32 v{wa+2}, v{EP+8}, 16, v{EP+8}"); a(f"v_cndmask_b32 v{wa+2}, 0, v{wa+2}, vcc")
        a(f"v_mov_b32 v{wa+3}, 0")
        a("s_lshl_b32 s57, s22, 10"); a(f"s_add_u32 s57, s57, {WAUGL + 3*1024}"); a("v_add_u32 v25, s57, v6")
        a(f"ds_write_b128 v25, {vr(wa,4)}")
    if isB:
        for r in range(4): a(f"v_mov_b32 v{ONES+r}, 0x3f803f80")
        for r in range(4): a(f"v_mov_b32 v{SQ+r}, 0")
        for f in f_dma(a, vm, 0): f()
        vm.wait("p0st")
        set_flag(a, 75, 244)
    else:
        a(f"v_mov_b32 v{ONES}, 0x3f803f80")
        a("v_and_b32 v25, 31, v1"); a("v_cmp_eq_u32 s[72:73], 28, v25")
        vm.wait(("st", 0))
    a("s_barrier")
    stamp(a, 2, vm)
    NRD = 3 if isB else 7
    if isB and 'noprio' not in ABL: a('s_setprio 2')
    reads(0); reads(1)
    issued = 2
    pendq = []
    for g in range(28):
        c, ks = g >> 2, g & 3
        extra = []
        if ks == 3 and c < 6:
            if "tickA" in ABL and c in (1, 2, 3): tick(a, 2*(c-1))
            if ("st", c+1) in vm.tags: vm.wait(("st", c+1), "lgkmcnt(0)")
            else: a("s_waitcnt lgkmcnt(0)")
            a("s_barrier")
            if c in (1, 2, 3): tick(a, 2*(c-1)+1)
            reads(g+1); reads(g+2); issued = g + 3
            if c + 4 <= 6: pendq += ab_dma8(a, vm, c+4)
            if c == 3:
                def zc():
                    a(f"v_mov_b32 v244, {CNT}"); a("v_lshl_add_u32 v244, v1, 2, v244"); a("v_mov_b32 v245, 0"); a("ds_write_b32 v244, v245")
                extra.append(zc)
                if isB: pendq += []
            if isB and c == 4: pendq += f_dma(a, vm, 1)
            if isB and c == 5: pendq += f_dma(a, vm, 2)
            if isB and c == 4:
                def fl(): vm.op(f"buffer_load_dword v{FLG}, v24, s[12:15], 0 offen sc0 sc1", "flag0")
                pendq.append(fl)
        else:
            lim = min(4*c + 4, 28)
            if issued <= g + 2 and issued < lim:
                reads(issued); issued += 1
            pend = issued - (g + 1)
            a(f"s_waitcnt lgkmcnt({min(pend*NRD, 15)})")
        npop = 1 if c < 4 else 2
        for _ in range(npop):
            if pendq: extra.append(pendq.pop(0))
        compute(g, extra)
    for f in pendq: f()
    if isB and 'noprio' not in ABL: a('s_setprio 0')
    if isB:
        a(f"v_add_f32 v{SQ}, v{SQ}, v{SQ+1}"); a(f"v_add_f32 v{SQ+2}, v{SQ+2}, v{SQ+3}"); a(f"v_add_f32 v{SQ}, v{SQ}, v{SQ+2}")
        a(f"v_mov_b32 v54, v{SQ}"); a(f"v_mov_b32 v55, v{SQ}"); a("v_permlane32_swap_b32 v54, v55"); a(f"v_add_f32 v{SQ}, v54, v55")
        a("v_and_b32 v25, 31, v1"); a("s_lshl_b32 s57, s22, 7"); a(f"s_add_u32 s57, s57, {SQL}"); a("v_lshl_add_u32 v25, v25, 2, s57")
        a(f"ds_write_b32 v25, v{SQ}")
        a("v_lshrrev_b32 v25, 5, v1"); a("v_lshlrev_b32 v25, 4, v25")
        a("s_lshl_b32 s57, s22, 7"); a(f"s_add_u32 s57, s57, {CSL}"); a("v_add_u32 v25, s57, v25")
        a("s_mov_b64 s[58:59], exec"); a("s_mov_b32 exec_lo, 1"); a("s_mov_b32 exec_hi, 1")
        for q in range(4): a(f"ds_write_b128 v25, {vr(CSA+4*q,4)} offset:{32*q}")
        a("s_mov_b64 exec, s[58:59]")
    a("s_waitcnt lgkmcnt(0)")
    a("s_barrier")
    tick_flush(a, 6, 20, vm)
    stamp(a, 3, vm)
    a("v_and_b32 v25, 31, v1"); a("s_lshl_b32 s57, s22, 7"); a(f"s_add_u32 s57, s57, {SQL}"); a("v_lshl_add_u32 v25, v25, 2, s57")
    if not isB:
        a(f"v_mov_b32 v54, v{ACC[0]+12}"); a(f"v_mov_b32 v55, v{ACC[0]+12}"); a("v_permlane32_swap_b32 v54, v55")
        a("ds_write_b32 v25, v55 offset:512")
        a("ds_read_b32 v35, v25")
        a("s_waitcnt lgkmcnt(0)")
        lds_inc(a, 8 + 0, 56)
        a("v_mov_b32 v34, v55")
    else:
        lds_wait(a, 8, 4, 56)
        a("ds_read_b32 v34, v25 offset:512"); a("ds_read_b32 v35, v25")
        a("s_waitcnt lgkmcnt(0)")
    a(f"v_mul_f32 v34, {hexf(1.0/448)}, v34")
    a(f"v_mul_f32 v35, {hexf(1.0/448)}, v35")
    a("v_fma_f32 v35, -v34, v34, v35"); a("v_max_f32 v35, 0, v35"); a(f"v_add_f32 v35, {hexf(1e-5)}, v35")
    a(f"v_rsq_f32 v{REC+4}, v35"); a(f"v_mul_f32 v{REC+5}, v35, v{REC+4}")
    a("v_cvt_pk_bf16_f32 v54, v34, v34"); a("v_and_b32 v54, 0xffff0000, v54"); a("v_sub_f32 v55, v34, v54")
    a(f"v_cvt_pk_bf16_f32 v{REC}, -v54, -v54"); a(f"v_cvt_pk_bf16_f32 v{REC+1}, -v55, -v55")
    a(f"v_cvt_pk_bf16_f32 v54, v{REC+5}, v{REC+5}"); a("v_and_b32 v54, 0xffff0000, v54"); a(f"v_sub_f32 v55, v{REC+5}, v54")
    a(f"v_cvt_pk_bf16_f32 v{REC+2}, v54, v55")
    a("v_cmp_gt_u32 vcc, 32, v1")
    for r in range(REC, REC+3): a(f"v_cndmask_b32 v{r}, 0, v{r}, vcc")
    a(f"v_mov_b32 v{REC+3}, 0")
    RS, SD, MEAN = REC+4, REC+5, 34
    K0, K1, SDP = 243, 244, 245
    LA = 5
    def f_setup():
        a(f"v_mul_f32 v{K0}, {hexf(GC0)}, v{RS}")
        a(f"v_mul_f32 v{K1}, v{RS}, v{RS}"); a(f"v_mul_f32 v{K1}, v{K1}, v{RS}"); a(f"v_mul_f32 v{K1}, {hexf(GC1)}, v{K1}")
        a(f"v_mov_b32 v{SDP}, v{SD}")
        a("s_mul_i32 s64, s71, 112*1024"); a(f"s_add_u32 s64, s64, {HF_OFF}")
    WF2 = [40, 44, 48, 52, 56, 60]
    XT = 8
    AC2 = [64, 80]
    T = 96; PKS = [112, 120]; WG2 = 36
    def gelu_ops(t, z):
        acc = AC2[z]
        ops = []
        A_ = lambda s_: ops.append(lambda s_=s_: a(s_))
        for h0 in (0, 8):
            R = range(h0, h0+8)
            for r in R: A_(f"v_mul_f32 v{T+r}, v{acc+r}, v{acc+r}")
            for r in R: A_(f"v_fma_f32 v{T+r}, v{T+r}, v{K1}, v{K0}")
            for r in R: A_(f"v_mul_f32 v{T+r}, v{T+r}, v{acc+r}")
            for r in R: A_(f"v_exp_f32 v{T+r}, v{T+r}")
            for r in R: A_(f"v_fma_f32 v{T+r}, v{T+r}, v{SDP}, v{SDP}")
            for r in R: A_(f"v_rcp_f32 v{T+r}, v{T+r}")
            for r in R: A_(f"v_mul_f32 v{T+r}, v{T+r}, v{acc+r}")
        PK = PKS[z]
        for r in range(8): A_(f"v_cvt_pk_bf16_f32 v{PK+r}, v{T+2*r}, v{T+2*r+1}")
        A_(f"s_lshl_b32 s67, s{60+t}, 5"); A_("s_add_u32 s67, s67, s64")
        A_(f"buffer_store_dwordx4 {vr(PK,4)}, v6, s[12:15], s67 offen sc1")
        A_(f"buffer_store_dwordx4 {vr(PK+4,4)}, v6, s[12:15], s67 offen offset:1024 sc1")
        return ops
    def fread(t, g):
        off = FLOC[t] + g*1024
        reg = FA + (off >> 16); off &= 0xffff
        a(f"ds_read_b64_tr_b16 {vr(WF2[g%6],2)}, v{reg} offset:{off}")
        a(f"ds_read_b64_tr_b16 {vr(WF2[g%6]+2,2)}, v{reg} offset:{off+256}")
    def tile(t, z, pend, pre_aug=None):
        acc = AC2[z]
        for g in range(LA): fread(t, g)
        per = (len(pend) + 25) // 26
        for g in range(28):
            if g + LA < 28: fread(t, g+LA)
            after = min(g + LA, 27) - g
            a(f"s_waitcnt lgkmcnt({2*after})")
            cc = "0" if g == 0 else vr(acc,16)
            a(f"v_mfma_f32_32x32x16_bf16 {vr(acc,16)}, {vr(WF2[g%6],4)}, {vr(XR+4*g,4)}, {cc}")
            for _ in range(per):
                if pend: pend.pop(0)()
        if pre_aug: pre_aug()
        a(f"v_add_u32 v25, {WAUGL + (3+t)*1024}, v6")
        a(f"ds_read_b128 {vr(WG2,4)}, v25")
        while pend: pend.pop(0)()
        a("s_waitcnt lgkmcnt(0)")
        a(f"v_mfma_f32_32x32x16_bf16 {vr(acc,16)}, {vr(WG2,4)}, {vr(REC,4)}, {vr(acc,16)}")
    if not isB:
        a("v_lshrrev_b32 v25, 5, v1"); a("v_lshlrev_b32 v25, 4, v25"); a(f"v_add_u32 v27, {CSL}, v25")
        a(f"v_mul_f32 v57, {hexf(CQ)}, v{RS}")
        a("v_cmp_le_u32 s[72:73], 32, v1")
        a("s_lshl_b32 s70, s22, 11"); a(f"s_add_u32 s70, s70, {TRS}")
        a("v_and_b32 v24, 31, v1"); a("v_lshlrev_b32 v24, 6, v24"); a("v_lshrrev_b32 v25, 5, v1"); a("v_lshl_add_u32 v24, v25, 3, v24")
        a("v_add_u32 v24, s70, v24")
        tr_lane_addr(a, 25, 26, 8); a("v_add_u32 v25, s70, v25")
        a("s_mov_b32 s88, s60"); a("s_mov_b32 s89, s61"); a("s_mov_b32 s90, s62") if False else None
        for pos in range(3):
            lv, le = L("EV"), L("EE")
            a("s_mul_i32 s64, s21, 3"); a(f"s_add_u32 s64, s64, {pos}")
            a("s_lshr_b32 s65, s64, 4"); a("s_and_b32 s64, s64, 15")
            a("s_lshl_b32 s66, s64, 6"); a("s_add_u32 s66, s66, s71")
            acc = ACC[pos]
            a("s_cmp_eq_u32 s65, 0"); a("s_cselect_b64 s[80:81], -1, 0")
            a(f"v_cndmask_b32 v56, v{RS}, v57, s[80:81]")
            for q in range(4): a(f"ds_read_b128 {vr(XT+4*q,4)}, v27 offset:{128*pos + 32*q}")
            a(f"v_mul_f32 v35, -v{MEAN}, v56")
            for r in range(16): a(f"v_mul_f32 v{acc+r}, v56, v{acc+r}")
            a("s_waitcnt lgkmcnt(0)")
            for r in range(16): a(f"v_fmac_f32 v{acc+r}, v35, v{XT+r}")
            PK = 40 + 8*(pos & 1) if pos < 2 else 68
            for r in range(8): a(f"v_cvt_pk_bf16_f32 v{PK+r}, v{acc+2*r}, v{acc+2*r+1}")
            a("s_mov_b32 s67, 0"); a("s_mov_b32 s68, 0")
            a("s_cmp_eq_u32 s65, 1"); a("s_cselect_b32 s67, 0x3f803f80, s67"); a("s_cselect_b32 s68, 0x00003f80, s68")
            a("s_cmp_eq_u32 s65, 2"); a("s_cselect_b32 s67, 0x00003f80, s67")
            a("v_mov_b32 v58, s67"); a("v_mov_b32 v59, s68")
            a(f"v_cndmask_b32 v{PK+6}, v{PK+6}, v58, s[72:73]"); a(f"v_cndmask_b32 v{PK+7}, v{PK+7}, v59, s[72:73]")
            a(f"s_cbranch_scc1 {lv}")
            a("s_lshl_b32 s67, s66, 11"); a("s_lshl_b32 s68, s66, 12"); a(f"s_add_u32 s68, s68, {KV_OFF}")
            a("s_cmp_eq_u32 s65, 0"); a("s_cselect_b32 s67, s67, s68")
            a(f"buffer_store_dwordx4 {vr(PK,4)}, v6, s[12:15], s67 offen sc1")
            a(f"buffer_store_dwordx4 {vr(PK+4,4)}, v6, s[12:15], s67 offen offset:1024 sc1")
            a(f"s_branch {le}")
            a.label(lv)
            for g in range(4): a(f"ds_write_b64 v24, {vr(PK+2*g,2)} offset:{16*g}")
            a("s_waitcnt lgkmcnt(0)")
            for f in range(2):
                a(f"ds_read_b64_tr_b16 {vr(60+4*f,2)}, v25 offset:{1024*f}")
                a(f"ds_read_b64_tr_b16 {vr(60+4*f+2,2)}, v25 offset:{1024*f+512}")
            a("s_lshl_b32 s68, s66, 12"); a(f"s_add_u32 s68, s68, {KV_OFF+2048}")
            a("s_waitcnt lgkmcnt(0)")
            a("buffer_store_dwordx4 v[60:63], v6, s[12:15], s68 offen sc1")
            a("buffer_store_dwordx4 v[64:67], v6, s[12:15], s68 offen offset:1024 sc1")
            a("s_nop 1")
            a.label(le)
        stamp(a, 4)
        tr_lane_addr(a, FA, 25, 9)
        a(f"v_add_u32 v{FA+1}, 0x10000, v{FA}"); a(f"v_add_u32 v{FA+2}, 0x10000, v{FA+1}")
        f_setup()
        lds_wait(a, 6, 4, 24)
        tile(2, 0, [], pre_aug=lambda: lds_wait(a, 9, 4, 24))
        a("s_waitcnt vmcnt(0)")
        flag_off(a, 91, G_FQ, 21, 20)
        wg_signal(a, 1, 4, [91], 56)
        stamp(a, 5)
        for f in gelu_ops(2, 0): f()
        stamp(a, 18)
        a("s_add_u32 s80, s21, 16"); a("s_mul_i32 s80, s80, 171"); a("s_lshr_b32 s80, s80, 9")
        a("s_add_u32 s81, s21, 32"); a("s_mul_i32 s81, s81, 171"); a("s_lshr_b32 s81, s81, 9")
        a("s_mul_i32 s82, s21, 171"); a("s_lshr_b32 s82, s82, 9")
        a("s_lshl_b32 s80, s80, 8"); a("s_lshl_b32 s81, s81, 8"); a("s_lshl_b32 s82, s82, 8")
        a("s_lshl_b32 s57, s20, 2"); a("s_add_u32 s82, s82, s57")
        a("v_and_b32 v24, 15, v1"); a("v_lshlrev_b32 v24, 2, v24")
        a("v_add_u32 v25, s80, v24"); a("v_add_u32 v26, s81, v24"); a("v_mov_b32 v27, s82")
        a("v_cmp_gt_u32 vcc, 16, v1"); a("v_cndmask_b32 v24, v26, v25, vcc")
        a("v_cmp_gt_u32 vcc, 32, v1"); a("v_cndmask_b32 v24, v27, v24, vcc")
        a(f"v_add_u32 v24, {FLG_OFF + G_FQ*256}, v24")
        check_or_poll(a, 24, 25, False)
        stamp(a, 16)
        lds_wait(a, 4, 4, 24)
        a("s_lshl_b32 s24, s21, 6"); a("s_lshr_b32 s57, s22, 1"); a("s_lshl_b32 s57, s57, 5"); a("s_add_u32 s24, s24, s57")
        a("s_and_b32 s57, s22, 1"); a("s_add_u32 s24, s24, s57"); a("s_lshl_b32 s24, s24, 12"); a(f"s_add_u32 s24, s24, {KV_OFF}")
        a("s_lshl_b32 s25, s22, 12")
        a("s_lshl_b32 s57, s21, 6"); a("s_add_u32 s57, s57, s71"); a("s_lshl_b32 s57, s57, 11")
        a("s_lshl_b32 s70, s22, 11"); a(f"s_add_u32 m0, s70, {QLOC0}")
        a("s_nop 0")
        a("buffer_load_dwordx4 v6, s[12:15], s57 offen sc1 lds")
        a("buffer_load_dwordx4 v6, s[12:15], s57 offen offset:1024 sc1 lds")
        for st in range(2):
            a(f"s_add_u32 m0, s25, {st*C_SLOT}")
            a("s_nop 0")
            for f in range(4): a(f"buffer_load_dwordx4 v6, s[12:15], s24 offen offset:{1024*f} sc1 lds")
            a("s_add_u32 s24, s24, 8192")
        a("s_waitcnt vmcnt(0)")
        stamp(a, 17)
    else:
        f_setup()
        a("s_lshr_b32 s69, s22, 1")
        vm.wait(("F", 2)); lds_inc(a, 6, 56)
        for f in f_dma(a, vm, 3): f()
        vm.wait("flag0")
        check_or_poll(a, 24, FLG, True)
        epi_loads()
        def pre0():
            lds_inc(a, 4, 56)
            vm.wait("epi")
            waug_build()
            a("s_waitcnt lgkmcnt(0)")
            lds_inc(a, 9, 56)
            lds_wait(a, 9, 4, 56)
        tile(0, 0, [], pre_aug=pre0)
        vm.wait(("F", 1)); lds_inc(a, 5, 24)
        lds_wait(a, 5, 4, 24)
        tile(1, 1, gelu_ops(0, 0))
        vm.wait(("F", 3)); lds_inc(a, 7, 24)
        sk, done = L("F3SK"), L("F3D")
        a("s_and_b32 s57, s21, 1"); a("s_cmp_eq_u32 s57, s69"); a(f"s_cbranch_scc0 {sk}")
        lds_wait(a, 7, 4, 24)
        tile(3, 0, gelu_ops(1, 1))
        for f in gelu_ops(3, 0): f()
        a(f"s_branch {done}")
        a.label(sk)
        for f in gelu_ops(1, 1): f()
        a.label(done)
        stamp(a, 4)
        a("s_waitcnt vmcnt(0)")
        stamp(a, 5)

C_SLOT = 16384; XCH = 16384
DSLOT = [65536, 98304, 131072, 0, 32768]
AFH = 128
AFO = 96

def phase_cd(a):
    a("s_and_b32 s57, s2, 7"); a("s_lshr_b32 s58, s2, 3"); a("s_and_b32 s59, s58, 3")
    a("s_lshl_b32 s42, s57, 2"); a("s_add_u32 s42, s42, s59")
    a("s_lshr_b32 s43, s58, 2")
    a("s_min_u32 s31, s43, 6"); a("s_lshl_b32 s31, s31, 7")
    srd(a, 8, 48, W2_BYTES)
    srd(a, 16, 40, WO_BYTES)
    a("v_lshrrev_b32 v5, 5, v1"); a("v_lshlrev_b32 v5, 2, v5"); a("v_bfe_u32 v7, v1, 2, 2"); a("v_add_u32 v5, v5, v7")
    a("v_mul_u32_u24 v5, 896, v5"); a("v_bfe_u32 v7, v1, 4, 1"); a("v_lshl_add_u32 v5, v7, 6, v5")
    a("v_and_b32 v7, 3, v1"); a("v_lshl_add_u32 v5, v7, 4, v5")
    a("s_lshl_b32 s27, s42, 1"); a("s_add_u32 s27, s27, s26")
    a("s_mul_i32 s28, s27, 112"); a("s_mul_i32 s57, s22, 28"); a("s_add_u32 s28, s28, s57")
    a("s_lshl_b32 s28, s28, 10"); a(f"s_add_u32 s28, s28, {HF_OFF}")
    a("s_lshl_b32 s29, s27, 15"); a("s_lshl_b32 s57, s22, 13"); a("s_add_u32 s29, s29, s57"); a(f"s_add_u32 s29, s29, {OF_OFF}")
    a("s_mul_i32 s30, s22, 28"); a("s_lshl_b32 s57, s26, 1"); a("s_add_u32 s30, s30, s57")
    a(f"s_mul_i32 s30, s30, {16*896}"); a("s_add_u32 s30, s30, s31")
    a("s_lshl_b32 s32, s22, 2"); a("s_add_u32 s32, s32, s26"); a(f"s_mul_i32 s32, s32, {28*896}"); a("s_add_u32 s32, s32, s31")
    a("s_lshl_b32 s33, s22, 13"); a("s_lshl_b32 s57, s26, 12"); a("s_add_u32 s33, s33, s57")
    a("s_lshr_b32 s57, s42, 1"); a("s_lshl_b32 s57, s57, 8")
    a("v_and_b32 v8, 15, v1"); a("v_lshlrev_b32 v8, 2, v8")
    a("s_lshl_b32 s58, s27, 8")
    a("v_add_u32 v9, s58, v8"); a(f"v_add_u32 v9, {FLG_OFF + G_FO*256}, v9")
    a("v_add_u32 v8, s57, v8"); a(f"v_add_u32 v8, {FLG_OFF + G_FH*256}, v8")
    srd(a, 80, 50, B2_BYTES)
    srd(a, 84, 52, OUT_BYTES)
    tr_lane_addr(a, 12, 13, 9)
    a("s_lshl_b32 s57, s22, 13"); a("v_add_u32 v12, s57, v12"); a("v_add_u32 v13, 0x10000, v12"); a("v_add_u32 v14, 0x20000, v12")
    a("s_lshr_b32 s34, s22, 1"); a("s_lshl_b32 s34, s34, 6"); a("s_add_u32 s34, s34, s31")
    a("s_and_b32 s35, s22, 1"); a("s_lshl_b32 s35, s35, 5"); a("s_add_u32 s34, s34, s35")
    a("v_lshrrev_b32 v15, 5, v1"); a("v_lshlrev_b32 v15, 3, v15"); a("v_add_u32 v15, s34, v15")
    a("v_and_b32 v11, 31, v1"); a("s_lshl_b32 s57, s27, 5"); a("v_add_u32 v11, s57, v11")
    a("v_mul_u32_u24 v11, 896, v11"); a("v_add_u32 v11, v11, v15")
    vm = DualVM(a)
    def d_dma(c):
        slot = DSLOT[c % 5]
        ops = []
        for kk in range(2):
            for hh in range(2):
                def f(kk=kk, hh=hh):
                    a(f"s_add_u32 m0, s33, {slot + kk*2048 + hh*1024}")
                    if c < 7:
                        a(f"s_add_u32 s57, s30, {((4*c + kk)*16 + 8*hh)*896}")
                        vm.op("buffer_load_dwordx4 v5, s[8:11], s57 offen lds", ("dst", c))
                    else:
                        a(f"s_add_u32 s57, s32, {(2*(c-7)*28 + 16*kk + 8*hh)*896}")
                        vm.op("buffer_load_dwordx4 v5, s[16:19], s57 offen lds", ("dst", c))
                ops.append(f)
        return ops
    a("s_mul_i32 s44, s22, 28"); a(f"s_mul_i32 s44, s44, {16*896}"); a("s_add_u32 s44, s44, s31")
    a("s_lshl_b32 s45, s22, 13")
    def d_pf(c, part):
        def f(v):
            for ks in (2*part, 2*part+1):
                for hh in range(2):
                    a(f"s_add_u32 m0, s45, {DSLOT[c] + ks*2048 + hh*1024}")
                    a(f"s_add_u32 s57, s44, {((4*c + ks)*16 + 8*hh)*896}")
                    v.op("buffer_load_dwordx4 v5, s[8:11], s57 offen lds", ("dst", c))
        return f
    def h_load(lk):
        def f():
            a(f"s_add_u32 s57, s28, {lk*1024}")
            vm.op(f"buffer_load_dwordx4 {vr(AFH+4*lk,4)}, v6, s[12:15], s57 offen sc1", ("h", lk))
        return f
    def kv_dma(st):
        def f(v):
            a(f"s_add_u32 m0, s25, {(st & 3)*C_SLOT}")
            a("s_nop 0")
            for q in range(4): v.op(f"buffer_load_dwordx4 v6, s[12:15], s24 offen offset:{1024*q} sc1 lds", ("kv", st))
            a("s_add_u32 s24, s24, 8192")
        return f
    QF = 112
    KF = [16, 24]; VF = [32, 40]; P = 48; S = [64, 80]; O = 96
    VA = 2
    a("s_lshl_b32 s57, s26, 13"); a(f"v_add_u32 v{VA}, s57, v6")
    for r in range(16): a(f"v_mov_b32 v{O+r}, 0")
    for r in range(8):
        a(f"v_mov_b32 v{P+r}, 0"); a(f"v_mov_b32 v{VF[1]+r}, 0")
    a("s_lshl_b32 s57, s22, 11"); a(f"s_add_u32 s57, s57, {QLOC0}"); a("v_add_u32 v7, s57, v6")
    a("s_barrier")
    stamp(a, 6, vm)
    vm.split([kv_dma(2), kv_dma(3)], [])
    nfh = L("NFH")
    a("s_cmp_eq_u32 s3, 4"); a(f"s_cbranch_scc0 {nfh}")
    flag_off(a, 60, G_FH, 20, 21)
    set_flag(a, 60, 56)
    a.label(nfh)
    vm.count()
    a(f"ds_read_b128 {vr(QF,4)}, v7"); a(f"ds_read_b128 {vr(QF+4,4)}, v7 offset:1024")
    a(f"ds_read_b128 {vr(KF[1],4)}, v6"); a(f"ds_read_b128 {vr(KF[1]+4,4)}, v6 offset:1024")
    a(f"ds_read_b128 {vr(KF[0],4)}, v{VA}"); a(f"ds_read_b128 {vr(KF[0]+4,4)}, v{VA} offset:1024")
    a("s_waitcnt lgkmcnt(2)")
    a(f"v_mfma_f32_32x32x16_bf16 {vr(S[1],16)}, {vr(KF[1],4)}, {vr(QF,4)}, 0")
    a(f"v_mfma_f32_32x32x16_bf16 {vr(S[1],16)}, {vr(KF[1]+4,4)}, {vr(QF+4,4)}, {vr(S[1],16)}")
    s1 = S[1]
    a(f"v_max3_f32 v56, v{s1}, v{s1+1}, v{s1+2}")
    for r in range(3, 15, 2): a(f"v_max3_f32 v56, v56, v{s1+r}, v{s1+r+1}")
    a(f"v_max_f32 v56, v56, v{s1+15}")
    a("v_mov_b32 v57, v56"); a("v_mov_b32 v58, v56"); a("v_permlane32_swap_b32 v57, v58"); a("v_max_f32 v56, v57, v58")
    a("v_cvt_pk_bf16_f32 v57, v56, v56"); a("v_and_b32 v57, 0xffff0000, v57"); a("v_sub_f32 v58, v56, v57")
    a("v_cvt_pk_bf16_f32 v59, v58, v58"); a("v_and_b32 v59, 0xffff0000, v59"); a("v_sub_f32 v58, v58, v59")
    a("v_cvt_pk_bf16_f32 v60, -v57, -v59"); a("v_mov_b32 v61, 0"); a("v_cvt_pk_bf16_f32 v61, -v58, v61")
    a("v_cmp_le_u32 vcc, 32, v1")
    a(f"v_cndmask_b32 v{QF+6}, v{QF+6}, v60, vcc"); a(f"v_cndmask_b32 v{QF+7}, v{QF+7}, v61, vcc")
    a("s_waitcnt lgkmcnt(0)")
    a(f"v_mfma_f32_32x32x16_bf16 {vr(S[0],16)}, {vr(KF[0],4)}, {vr(QF,4)}, 0")
    a(f"v_mfma_f32_32x32x16_bf16 {vr(S[0],16)}, {vr(KF[0]+4,4)}, {vr(QF+4,4)}, {vr(S[0],16)}")
    def addr(u, f):
        u = min(u, 31)
        st, tt = u >> 1, u & 1
        return f"v{VA} offset:{(st & 3)*C_SLOT + tt*4096 + f*1024}"
    a(f"ds_read_b128 {vr(KF[1],4)}, {addr(1,0)}"); a(f"ds_read_b128 {vr(KF[1]+4,4)}, {addr(1,1)}")
    a(f"ds_read_b128 {vr(VF[0],4)}, {addr(0,2)}"); a(f"ds_read_b128 {vr(VF[0]+4,4)}, {addr(0,3)}")
    stamp(a, 7, vm)
    sched = {st: [] for st in range(16)}
    hisched = {st: [] for st in range(16)}
    if "nopf" not in ABL:
        def warm(part):
            def f(v):
                a("s_and_b32 s57, s42, 3")
                if part < 2:
                    a("s_mul_i32 s57, s57, 448"); a("s_mul_i32 s58, s22, 112"); a("s_add_u32 s57, s57, s58")
                    if part == 1: a("s_add_u32 s57, s57, 48")
                    a("v_add_u32 v62, s57, v1"); a("v_mul_u32_u24 v62, 896, v62")
                    v.op("buffer_load_dword v63, v62, s[8:11], s31 offen")
                else:
                    a("s_mul_i32 s57, s57, 112"); a("s_mul_i32 s58, s22, 28"); a("s_add_u32 s57, s57, s58")
                    a("v_min_u32 v62, 27, v1"); a("v_add_u32 v62, s57, v62"); a("v_mul_u32_u24 v62, 896, v62")
                    v.op("buffer_load_dword v63, v62, s[16:19], s31 offen")
            return f
        if 'nowarmc' not in ABL:
            hisched[0].append(warm(0)); hisched[1].append(warm(1)); hisched[2].append(warm(2))
        for c in range(3):
            hisched[3+2*c].append(d_pf(c, 0)); hisched[4+2*c].append(d_pf(c, 1))
        def fh_load(): vm.op("buffer_load_dword v10, v8, s[12:15], 0 offen sc0 sc1", "fh")
        sched[3].append(fh_load)
        def res_loads():
            vm.op("buffer_load_dwordx2 v[240:241], v11, s[4:7], 0 offen")
            vm.op("buffer_load_dwordx2 v[242:243], v11, s[4:7], 0 offen offset:16")
            vm.op("buffer_load_dwordx2 v[244:245], v15, s[80:83], 0 offen")
            vm.op("buffer_load_dwordx2 v[246:247], v15, s[80:83], 0 offen offset:16", "res")
        sched[14].append(res_loads)
        lk = 0
        if 'hlate' in ABL:
            pass
        else:
            for st in range(7, 14):
                for _ in range(4):
                    sched[st].append(h_load(lk)); lk += 1
    def PR(u):
        l1, l2 = L("PR"), L("PR")
        a("s_cmp_eq_u32 s26, 0"); a(f"s_cbranch_scc1 {l1}")
        a(f"s_setprio {(u & 1)}"); a(f"s_branch {l2}")
        a.label(l1); a(f"s_setprio {1 - (u & 1)}")
        a.label(l2)
    for u in range(32):
        st, tt = u >> 1, u & 1
        z = u & 1
        sc = S[z]; sn = S[z ^ 1]
        extra = []
        if tt == 0:
            lo_ops = []
            if st > 0:
                if st + 1 <= 15 and st + 1 >= 2:
                    vm.split([lambda v, st=st: v.wait(("kv", st+1))], [])
                if st <= 14: a("s_barrier")
                if st + 3 <= 15: lo_ops.append(kv_dma(st+3))
            if lo_ops or hisched[st]:
                extra.append(lambda lo_ops=lo_ops, st=st: vm.split(lo_ops, hisched[st]))
            if st == 6 and "nopf" not in ABL:
                vm.wait("fh")
                check_or_poll(a, 8, 10, True)
        half = sched[st][: (len(sched[st])+1)//2] if tt == 0 else sched[st][(len(sched[st])+1)//2:]
        extra += half
        E = lambda k: a(f"v_exp_f32 v{sc+k}, v{sc+k}")
        Pk = lambda k: a(f"v_cvt_pk_bf16_f32 v{P+k}, v{sc+2*k}, v{sc+2*k+1}")
        def X(n=1):
            for _ in range(n):
                if extra: extra.pop(0)()
        if PRIO: PR(u)
        E(0); E(1)
        a(f"v_mfma_f32_32x32x16_bf16 {vr(O,16)}, {vr(VF[z^1]+4,4)}, {vr(P+4,4)}, {vr(O,16)}")
        a(f"ds_read_b128 {vr(KF[z],4)}, {addr(u+2,0)}"); a(f"ds_read_b128 {vr(KF[z]+4,4)}, {addr(u+2,1)}")
        E(2); Pk(0); E(3); X(); E(4); Pk(1)
        a("s_waitcnt lgkmcnt(4)")
        a(f"v_mfma_f32_32x32x16_bf16 {vr(sn,16)}, {vr(KF[z^1],4)}, {vr(QF,4)}, 0")
        a(f"ds_read_b128 {vr(VF[z^1],4)}, {addr(u+1,2)}"); a(f"ds_read_b128 {vr(VF[z^1]+4,4)}, {addr(u+1,3)}")
        E(5); E(6); Pk(2); X(); E(7); E(8); Pk(3)
        a(f"v_mfma_f32_32x32x16_bf16 {vr(sn,16)}, {vr(KF[z^1]+4,4)}, {vr(QF+4,4)}, {vr(sn,16)}")
        E(9); E(10); Pk(4); X(); E(11)
        a("s_waitcnt lgkmcnt(4)")
        a(f"v_mfma_f32_32x32x16_bf16 {vr(O,16)}, {vr(VF[z],4)}, {vr(P,4)}, {vr(O,16)}")
        E(12); Pk(5); E(13); X(len(extra)); E(14); Pk(6); E(15)
        a("s_nop 0")
        Pk(7)
    stamp(a, 8, vm)
    a("s_waitcnt lgkmcnt(0)")
    a("s_nop 1")
    a(f"v_mfma_f32_32x32x16_bf16 {vr(O,16)}, {vr(VF[1]+4,4)}, {vr(P+4,4)}, {vr(O,16)}")
    a("s_lshl_b32 s57, s22, 12"); a(f"s_add_u32 s57, s57, {XCH}"); a("v_add_u32 v7, s57, v6")
    a("s_lshl_b32 s57, s20, 2"); a("s_add_u32 s57, s57, s22"); a("s_lshl_b32 s60, s57, 8")
    a("s_lshl_b32 s58, s21, 2"); a("s_add_u32 s60, s60, s58"); a(f"s_add_u32 s60, s60, {FLG_OFF + G_FO*256}")
    a("s_lshl_b32 s57, s57, 4"); a("s_add_u32 s57, s57, s21"); a("s_lshl_b32 s57, s57, 11"); a(f"s_add_u32 s61, s57, {OF_OFF}")
    a("s_cmp_eq_u32 s26, 0")
    a("s_cselect_b32 s61, s61, 0x7fffff00")
    a("s_cbranch_scc1 C_LO")
    for q in range(4): a(f"ds_write_b128 v7, {vr(O+4*q,4)} offset:{1024*q}")
    if "nopf" not in ABL: vm.hi.wait(("dst", 2))
    a("s_waitcnt lgkmcnt(0)")
    a("s_barrier")
    a("s_branch C_DONE")
    a.label("C_LO")
    a("s_barrier")
    for q in range(4): a(f"ds_read_b128 {vr(64+4*q,4)}, v7 offset:{1024*q}")
    a("s_waitcnt lgkmcnt(0)")
    for r in range(16): a(f"v_add_f32 v{O+r}, v{O+r}, v{64+r}")
    a(f"v_mov_b32 v57, v{O+12}"); a(f"v_mov_b32 v58, v{O+12}"); a("v_permlane32_swap_b32 v57, v58")
    a("v_rcp_f32 v58, v58"); a("v_cmp_gt_u32 vcc, 32, v1"); a("v_cndmask_b32 v59, 0, v58, vcc")
    for r in range(12): a(f"v_mul_f32 v{O+r}, v58, v{O+r}")
    for r in range(12, 16): a(f"v_mul_f32 v{O+r}, v59, v{O+r}")
    for r in range(8): a(f"v_cvt_pk_bf16_f32 v{56+r}, v{O+2*r}, v{O+2*r+1}")
    a.label("C_DONE")
    vm.op("buffer_store_dwordx4 v[56:59], v6, s[12:15], s61 offen sc1")
    vm.op("buffer_store_dwordx4 v[60:63], v6, s[12:15], s61 offen offset:1024 sc1", "ost")
    stamp(a, 9, vm)
    idle = L("IDLE")
    a("s_cmp_eq_u32 s43, 7")
    a(f"s_cbranch_scc0 {idle}")
    a("s_waitcnt vmcnt(0)")
    a("s_cmp_eq_u32 s26, 0"); a("s_cbranch_scc0 K_END")
    set_flag(a, 60, 56)
    a("s_branch K_END")
    a.label(idle)
    if "nopf" in ABL:
        check_or_poll(a, 8, 10, False)
        for c in range(3):
            for f in d_dma(c): f()
        for lk in range(28): h_load(lk)()
    for f in d_dma(4): f()
    DLA = 4
    WF = [[16+8*q, 20+8*q] for q in range(5)]
    ACCD = [64, 80]
    for t in range(2):
        for r in range(16): a(f"v_mov_b32 v{ACCD[t]+r}, 0")
    def dreads(g):
        c, ks, z = g >> 2, g & 3, g % 5
        base = DSLOT[c % 5] + ks*2048
        for t in range(2):
            off = base + t*256
            reg = 12 + (off >> 16); off &= 0xffff
            assert off + 1024 <= 65535
            a(f"ds_read_b64_tr_b16 {vr(WF[z][t],2)}, v{reg} offset:{off}")
            a(f"ds_read_b64_tr_b16 {vr(WF[z][t]+2,2)}, v{reg} offset:{off+1024}")
    def dcompute(g, extra=()):
        z = g % 5
        af = AFH + 4*(28*0 + g) if g < 28 else AFO + 4*(g-28)
        extra = list(extra)
        for t in range(2):
            a(f"v_mfma_f32_32x32x16_bf16 {vr(ACCD[t],16)}, {vr(WF[z][t],4)}, {vr(af,4)}, {vr(ACCD[t],16)}")
            k = (len(extra) + (2 - t) - 1) // (2 - t)
            for f in extra[:k]: f()
            extra = extra[k:]
    if "nopf" in ABL:
        vm.wait(("h", 27)); a("s_barrier")
    if 'hlate' in ABL:
        for lk in range(28): h_load(lk)()
    stamp(a, 10, vm)
    vm.wait(("h", 27))
    for g in range(DLA): dreads(g)
    for g in range(36):
        c, ks = g >> 2, g & 3
        extra = []
        if ks == 0 and c < 8:
            if c + 1 >= 3: vm.wait(("dst", c+1))
            if c > 0 or True: a("s_barrier")
            if c == 0: extra += d_dma(3)
            if c >= 1 and c + 4 <= 8: extra += d_dma(c+4)
        if g + DLA < 36: dreads(g+DLA)
        after = min(g + DLA, 35) - g
        a(f"s_waitcnt lgkmcnt({min(4*after, 15)})")
        if g == 9:
            vm.wait("ost")
            nf = L("NFO")
            a("s_cmp_eq_u32 s26, 0"); a(f"s_cbranch_scc0 {nf}")
            set_flag(a, 60, 56)
            a.label(nf)
            def fo(): vm.op("buffer_load_dword v10, v9, s[12:15], 0 offen sc0 sc1", "fo")
            extra.append(fo)
        if g == 17:
            vm.wait("fo")
            check_or_poll(a, 9, 10, True)
            stamp(a, 11, vm)
            for q in range(8):
                def f(q=q):
                    a(f"s_add_u32 s57, s29, {q*1024}")
                    vm.op(f"buffer_load_dwordx4 {vr(AFO+4*q,4)}, v6, s[12:15], s57 offen sc1", ("o", q))
                extra.append(f)
        if g == 28: vm.wait(("o", 7))
        dcompute(g, extra)
    stamp(a, 12, vm)
    a("s_barrier")
    a("s_lshl_b32 s57, s26, 15"); a("s_lshl_b32 s58, s22, 11"); a("s_add_u32 s57, s57, s58"); a("v_add_u32 v14, s57, v6")
    for q in range(4):
        acc = ACCD[q >> 1] + 8*(q & 1)
        k1, k2 = L("SKW"), L("SKX")
        a(f"s_cmp_eq_u32 s22, {q}"); a(f"s_cbranch_scc1 {k1}")
        a(f"ds_write_b128 v14, {vr(acc,4)} offset:{q*8192}"); a(f"ds_write_b128 v14, {vr(acc+4,4)} offset:{q*8192+1024}")
        a(f"s_branch {k2}")
        a.label(k1)
        for r in range(8): a(f"v_mov_b32 v{96+r}, v{acc+r}")
        a.label(k2)
    a("s_waitcnt lgkmcnt(0)")
    a("s_barrier")
    a("s_lshl_b32 s57, s26, 15"); a("s_lshl_b32 s58, s22, 13"); a("s_add_u32 s57, s57, s58"); a("v_add_u32 v14, s57, v6")
    for i in range(1, 4):
        a(f"s_add_u32 s57, s22, {i}"); a("s_and_b32 s57, s57, 3"); a("s_lshl_b32 s57, s57, 11"); a("v_add_u32 v15, s57, v14")
        a(f"ds_read_b128 {vr(104+8*(i-1),4)}, v15"); a(f"ds_read_b128 {vr(108+8*(i-1),4)}, v15 offset:1024")
    a("s_waitcnt vmcnt(0) lgkmcnt(0)")
    for r in range(8):
        a(f"v_add_f32 v{96+r}, v{96+r}, v{104+r}"); a(f"v_add_f32 v{112+r}, v{112+r}, v{120+r}")
    for r in range(8): a(f"v_add_f32 v{96+r}, v{96+r}, v{112+r}")
    for g in range(2):
        for w in range(2):
            for src in (240 + 2*g + w, 244 + 2*g + w):
                a(f"v_lshlrev_b32 v15, 16, v{src}"); a(f"v_add_f32 v{96+4*g+2*w}, v{96+4*g+2*w}, v15")
                a(f"v_and_b32 v15, 0xffff0000, v{src}"); a(f"v_add_f32 v{96+4*g+2*w+1}, v{96+4*g+2*w+1}, v15")
    for r in range(4): a(f"v_cvt_pk_bf16_f32 v{20+r}, v{96+2*r}, v{96+2*r+1}")
    a("buffer_store_dwordx2 v[20:21], v11, s[84:87], 0 offen")
    a("buffer_store_dwordx2 v[22:23], v11, s[84:87], 0 offen offset:16")
    ne = L("NEP")
    a("s_or_b32 s57, s2, s3"); a("s_cmp_eq_u32 s57, 0"); a(f"s_cbranch_scc0 {ne}")
    a(f"s_mov_b32 s60, {EPOCH_OFF}")
    set_flag(a, 60, 40)
    a.label(ne)
    if STAMP: a("s_waitcnt vmcnt(0)")
    stamp(a, 13)

PRIO = int(os.environ.get('PRIO','0'))
def kernel_desc(name, vgpr, sgpr=102):
    return f""".amdhsa_kernel {name}
  .amdhsa_next_free_vgpr {vgpr}
  .amdhsa_next_free_sgpr {sgpr}
  .amdhsa_accum_offset {(vgpr+3)//4*4}
  .amdhsa_group_segment_fixed_size 0
  .amdhsa_kernarg_size 88
  .amdhsa_user_sgpr_count 2
  .amdhsa_user_sgpr_kernarg_segment_ptr 1
  .amdhsa_system_sgpr_workgroup_id_x 1
  .amdhsa_float_denorm_mode_32 3
.end_amdhsa_kernel
"""
HEADER = open("cdna_kernels/%s.s.ref" % NAME).read().split("; Override launch")[0]

def main(out):
    txt = HEADER
    txt += f"; @launch grid=(256,1,1) block=(512,1,1) lds={LDS_BYTES}\n"
    txt += '.amdgcn_target "amdgcn-amd-amdhsa--gfx950"\n.text\n'
    a = Asm()
    gen(a)
    a.fix_hazards(verbose=bool(os.environ.get("VERB")))
    print("instructions:", sum(1 for x in a.ins if x.kind not in ("label","directive")), "nop fixes:", a.nops_added)
    txt += f".globl {KNAME}\n.p2align 8\n.type {KNAME},@function\n" + a.text()
    txt += '.section .rodata,"a"\n.p2align 6\n' + kernel_desc(KNAME, 256 if STAMP else NVGPR)
    open(out, "w").write(txt)

if __name__ == "__main__":
    main(sys.argv[1] if len(sys.argv) > 1 else "g.s")
```
